```python
import torch

def _softmax(x, axis=-1):
    return torch.softmax(x, dim=axis)
def _gelu(x):
    return torch.nn.functional.gelu(x, approximate="tanh")
def _silu(x):
    return torch.nn.functional.silu(x)
def _sigmoid(x):
    return torch.sigmoid(x)
def _layernorm(x, axis=-1, eps=1e-5):
    m = x.mean(dim=axis, keepdim=True)
    v = x.var(dim=axis, keepdim=True, unbiased=False)
    return (x - m) / torch.sqrt(v + eps)
def _scatter_add(tgt, idx, src, axis=0):
    return tgt.clone().index_add_(axis, idx, src)
def _segment_sum(src, seg, n):
    out = torch.zeros((n,) + src.shape[1:], dtype=src.dtype)
    return out.index_add_(0, seg, src)
def _pad(x, pw):
    flat = tuple(v for pair in reversed(pw) for v in pair)
    return torch.nn.functional.pad(x, flat)

kernel_name = 'recurrent_scan__ssm_conv_s4__swiglu_ffn__prompt'

def setup_inputs():

    _w = (lambda a: (lambda t: t.to(torch.bfloat16) if t.is_floating_point() else t)(torch.as_tensor(a)))
    def _A_setup():
        B, L, D, N = 1, 2048, 512, 128
        A_re = -(lambda _x: torch.exp(torch.as_tensor(_x)))((lambda *s: torch.randn(*s, dtype=torch.bfloat16) * 3.2)(D, N))
        A_im = torch.pi * (lambda *s: torch.randn(*s, dtype=torch.bfloat16) * 0.05)(D, N)
        B_re = (lambda *s: torch.randn(*s, dtype=torch.bfloat16) * 0.1)(D, N)
        B_im = (lambda *s: torch.randn(*s, dtype=torch.bfloat16) * 0.1)(D, N)
        C_re = (lambda *s: torch.randn(*s, dtype=torch.bfloat16) * 0.1)(D, N)
        C_im = (lambda *s: torch.randn(*s, dtype=torch.bfloat16) * 0.1)(D, N)
        log_dt = (lambda *s: torch.randn(*s, dtype=torch.bfloat16) * 0.05)(D) * 0.5 - 4.0
        Dskip = (lambda *s: torch.randn(*s, dtype=torch.bfloat16) * 0.05)(D)
        return {
            "u": _w((lambda *s: torch.randn(*s, dtype=torch.bfloat16) * 0.05)(B, L, D)),
            "A_re": _w(A_re),
            "A_im": _w(A_im),
            "B_re": _w(B_re),
            "B_im": _w(B_im),
            "C_re": _w(C_re),
            "C_im": _w(C_im),
            "log_dt": _w(log_dt),
            "Dskip": _w(Dskip),
        }
    _A_in = _A_setup()

    def _B_setup():
        B, S, D, F = 1, 2048, 512, 1792
        return {
            "x": _w((lambda *s: torch.randn(*s, dtype=torch.bfloat16) * 0.05)(B, S, D)),
            "w_gate": _w((lambda *s: torch.randn(*s, dtype=torch.bfloat16) * 0.05)(D, F)),
            "w_up": _w((lambda *s: torch.randn(*s, dtype=torch.bfloat16) * 0.05)(D, F)),
            "w_down": _w((lambda *s: torch.randn(*s, dtype=torch.bfloat16) * 0.05)(F, D)),
        }
    _B_in = _B_setup()

    return {
        "A_u": _A_in["u"],
        "A_A_re": _A_in["A_re"],
        "A_A_im": _A_in["A_im"],
        "A_B_re": _A_in["B_re"],
        "A_B_im": _A_in["B_im"],
        "A_C_re": _A_in["C_re"],
        "A_C_im": _A_in["C_im"],
        "A_log_dt": _A_in["log_dt"],
        "A_Dskip": _A_in["Dskip"],
        "B_x": _B_in["x"],
        "B_w_gate": _B_in["w_gate"],
        "B_w_up": _B_in["w_up"],
        "B_w_down": _B_in["w_down"],
    }

def reference(A_u, A_A_re, A_A_im, A_B_re, A_B_im, A_C_re, A_C_im, A_log_dt, A_Dskip, B_x, B_w_gate, B_w_up, B_w_down):
    def _A_ref(u, A_re, A_im, B_re, B_im, C_re, C_im, log_dt, Dskip):
        Bsz, L, D = u.shape
        dt = torch.exp(log_dt)[:, None]
        A = A_re + 1j * A_im
        Bc = B_re + 1j * B_im
        Cc = C_re + 1j * C_im
        logdA = dt * A
        dB = dt * Bc
        l = (lambda x, dt: x.to(dt))(torch.arange(L), A_re.dtype)
        P = torch.exp(logdA[:, :, None] * l[None, None, :])
        K = torch.einsum("dn,dnl,dn->dl", Cc, P, dB).real
        L2 = 2 * L
        Kp = _pad(K, ((0, 0), (0, L)))
        up = (lambda x, *d: x.permute(*d))(u, 0, 2, 1)
        up = _pad(up, ((0, 0), (0, 0), (0, L)))
        Kf = (lambda x, axes=(-2,-1): torch.fft.rfft2(x.float(), dim=axes))(Kp[:, None, :], axes=(-2, -1))
        Uf = (lambda x, axes=(-2,-1): torch.fft.rfft2(x.float(), dim=axes))(up[:, :, None, :], axes=(-2, -1))
        Yf = Uf * Kf[None, :, :, :]
        y = (lambda x, s, axes=(-2,-1): torch.fft.irfft2(x, s=s, dim=axes).to(torch.bfloat16))(Yf, (1, L2), axes=(-2, -1))[:, :, 0, :L]
        y = (lambda x, *d: x.permute(*d))(y, 0, 2, 1) + u * Dskip[None, None, :]
        return y

    def _B_ref(x, w_gate, w_up, w_down):
        g = _silu(x @ w_gate)
        u = x @ w_up
        return (g * u) @ w_down

    x = A_u
    xn = _layernorm(x, axis=-1)
    s = _A_ref(xn, A_A_re, A_A_im, A_B_re, A_B_im, A_C_re, A_C_im, A_log_dt, A_Dskip)
    g = _silu(_B_ref(xn, B_w_gate, B_w_up, B_w_down))
    return x + s * g
```

```python
import re

def v(i, n=1):
    return f"v{i}" if n == 1 else f"v[{i}:{i+n-1}]"
def s(i, n=1):
    return f"s{i}" if n == 1 else f"s[{i}:{i+n-1}]"

class Alloc:
    def __init__(self, n, start=0, name="v"):
        self.n = n; self.used = [False] * n; self.name = name; self.hi = 0
        for i in range(start): self.used[i] = True
        self.hi = start
    def alloc(self, cnt=1, align=1):
        i = 0
        while i + cnt <= self.n:
            if i % align == 0 and not any(self.used[i:i+cnt]):
                for j in range(i, i+cnt): self.used[j] = True
                self.hi = max(self.hi, i + cnt)
                return i
            i += 1
        raise RuntimeError(f"out of {self.name} registers (need {cnt})")
    def free(self, i, cnt=1):
        for j in range(i, i+cnt):
            assert self.used[j], (self.name, j)
            self.used[j] = False
    def snapshot(self): return list(self.used)
    def restore(self, snap): self.used = list(snap)

TRANS = ("v_exp_f32", "v_log_f32", "v_rcp_f32", "v_rsq_f32", "v_sqrt_f32", "v_sin_f32", "v_cos_f32", "v_rcp_iflag_f32")
REG_RE = re.compile(r"^(-|\|)?(abs\()?([vsa])(?:(\d+)|\[(\d+):(\d+)\])\)?\|?$")

def parse_reg(op):
    op = op.strip()
    if op in ("vcc",): return [("s", "vcc")]
    if op in ("vcc_lo", "vcc_hi"): return [("s", "vcc")]
    if op == "exec" or op in ("exec_lo", "exec_hi"): return [("s", "exec")]
    if op == "m0": return [("s", "m0")]
    if op == "scc": return [("s", "scc")]
    m = REG_RE.match(op)
    if not m: return []
    k = m.group(3)
    if m.group(4) is not None: return [(k, int(m.group(4)))]
    return [(k, i) for i in range(int(m.group(5)), int(m.group(6)) + 1)]

class Ins:
    __slots__ = ("text", "op", "ops", "mods", "kind", "dst", "src", "label", "target", "passes", "srcC", "trans", "dpp")
    def __init__(self, text):
        self.text = text; self.label = None; self.target = None
        t = text.split(";")[0].strip()
        self.op = ""; self.ops = []; self.mods = ""; self.kind = "other"; self.dst = []; self.src = []
        self.passes = 0; self.srcC = []; self.trans = False; self.dpp = False
        if not t: self.kind = "none"; return
        if t.endswith(":"): self.label = t[:-1]; self.kind = "label"; return
        if t.startswith("."): self.kind = "none"; return
        parts = t.split(None, 1)
        self.op = parts[0]
        rest = parts[1] if len(parts) > 1 else ""
        ops = []; depth = 0; cur = ""
        for ch in rest:
            if ch in "[(": depth += 1
            if ch in "])": depth -= 1
            if ch == "," and depth == 0: ops.append(cur.strip()); cur = ""
            else: cur += ch
        if cur.strip(): ops.append(cur.strip())
        if ops:
            last = ops[-1].split(None, 1)
            ops[-1] = last[0]
            self.mods = last[1] if len(last) > 1 else ""
        self.ops = ops
        self.classify()
    def classify(self):
        op = self.op; ops = self.ops
        R = lambda i: parse_reg(ops[i]) if i < len(ops) else []
        allsrc = lambda a: sum((parse_reg(o) for o in ops[a:]), [])
        if op.startswith("v_mfma"):
            self.kind = "mfma"; self.dst = R(0); self.src = R(1) + R(2) + R(3); self.srcC = R(3)
            if "32x32x16" in op: self.passes = 8
            elif "16x16x32" in op: self.passes = 4
            elif "32x32x2_f32" in op or "16x16x4_f32" in op: raise NotImplementedError(op)
            else: raise NotImplementedError(op)
        elif op.startswith("v_"):
            self.kind = "valu"
            base = op.replace("_e32", "").replace("_e64", "").replace("_dpp", "").replace("_sdwa", "")
            self.trans = base in TRANS
            self.dpp = ("row_" in self.mods or "quad_perm" in self.mods or "wave_" in self.mods)
            if base.startswith("v_cmpx"):
                self.dst = R(0) + [("s", "exec")]; self.src = allsrc(1)
            elif base.startswith("v_cmp"):
                self.dst = R(0); self.src = allsrc(1)
            elif base in ("v_permlane32_swap_b32", "v_permlane16_swap_b32"):
                self.dst = R(0) + R(1); self.src = R(0) + R(1)
            elif base in ("v_add_co_u32", "v_sub_co_u32", "v_subrev_co_u32", "v_addc_co_u32", "v_subb_co_u32"):
                self.dst = R(0) + R(1); self.src = allsrc(2)
            elif base in ("v_fmac_f32", "v_dot2c_f32_bf16", "v_pk_fmac_f16", "v_writelane_b32"):
                self.dst = R(0); self.src = R(0) + allsrc(1)
            else:
                self.dst = R(0); self.src = allsrc(1)
                if base == "v_cndmask_b32" and len(ops) == 3: self.src += [("s", "vcc")]
                if "dst_unused:UNUSED_PRESERVE" in self.mods or ("op_sel" in self.mods and base.startswith("v_cvt")): self.src += R(0)
                if self.dpp: self.src += R(0)
        elif op.startswith("buffer_") or op.startswith("global_") or op.startswith("flat_"):
            self.kind = "vmem"
            islds = " lds" in (" " + self.mods) or op.startswith("global_load_lds")
            if op in ("buffer_inv", "buffer_wbl2"): pass
            elif "store" in op: self.src = allsrc(0)
            elif "atomic" in op:
                self.src = allsrc(0)
                if "sc0" in self.mods: self.dst = R(0) if op.startswith("buffer") else R(0)
            elif islds:
                self.src = allsrc(0) + [("s", "m0")]
            else:
                self.dst = R(0); self.src = allsrc(1)
                if "d16" in op: self.src += R(0)
        elif op.startswith("ds_"):
            self.kind = "ds"
            if op.startswith("ds_read") or "_rtn" in op or op.startswith("ds_bpermute") or op.startswith("ds_permute") or op.startswith("ds_swizzle"):
                self.dst = R(0); self.src = allsrc(1)
                if "d16" in op: self.src += R(0)
            else: self.src = allsrc(0)
            if "addtid" in op: self.src += [("s", "m0")]
        elif op.startswith("s_"):
            self.kind = "salu"
            if op in ("s_nop", "s_waitcnt", "s_barrier", "s_endpgm", "s_sleep", "s_setprio", "s_branch") or op.startswith("s_cbranch"):
                if op == "s_branch" or op.startswith("s_cbranch"): self.target = ops[0]
            elif op.startswith("s_cmp") or op.startswith("s_bitcmp"):
                self.src = allsrc(0); self.dst = [("s", "scc")]
            elif op.startswith("s_load") or op.startswith("s_memtime") or op.startswith("s_memrealtime") or op.startswith("s_getreg"):
                self.kind = "smem" if not op.startswith("s_getreg") else "salu"
                self.dst = R(0); self.src = allsrc(1)
            elif "saveexec" in op:
                self.dst = R(0) + [("s", "exec")]; self.src = allsrc(1) + [("s", "exec")]
            else:
                self.dst = R(0); self.src = allsrc(1)
    def states(self):
        if self.kind in ("none", "label"): return 0
        if self.op == "s_nop": return int(self.ops[0], 0) + 1
        return 1

def overlap(a, b):
    return bool(set(a) & set(b))
def vregs(l): return [x for x in l if x[0] in ("v", "a")]
def sregs(l): return [x for x in l if x[0] == "s"]

def required(p, c):
    need = 0
    pv = vregs(p.dst); ps = [x for x in sregs(p.dst) if x[1] != "scc"]
    if p.kind == "valu":
        if c.kind == "mfma" and overlap(pv, c.src): need = max(need, 2)
        if p.trans and c.kind == "valu" and not c.trans and overlap(pv, c.src): need = max(need, 1)
        if p.trans and c.kind == "valu" and c.trans and overlap(pv, c.src): need = max(need, 1)
        if c.kind == "valu":
            if c.op.startswith(("v_readlane", "v_readfirstlane")) and overlap(pv, c.src): need = max(need, 1)
            if c.op.startswith("v_permlane") and overlap(pv, c.src): need = max(need, 2)
            if c.dpp and overlap(pv, c.src): need = max(need, 2)
            if ps and overlap(ps, c.src):
                need = max(need, 4 if c.op.startswith(("v_readlane", "v_writelane")) else 2)
            if ("s", "exec") in p.dst and (c.dpp): need = max(need, 5)
            if ("sdwa" in p.op or "dst_sel" in p.mods) and "dst_sel:DWORD" not in p.mods and overlap(pv, c.src): need = max(need, 1)
        if c.kind == "vmem" and ps and overlap(ps, c.src): need = max(need, 5)
        if c.kind == "mfma" and ("s", "exec") in p.dst: need = max(need, 4)
        if c.kind == "salu" and ps and overlap(ps, c.src): need = max(need, 1)
    if p.kind == "mfma":
        n = p.passes
        if c.kind == "mfma":
            if overlap(p.dst, c.srcC):
                if c.srcC != p.dst or c.passes != p.passes: need = max(need, {4: 6, 8: 10}[n])
            ab = [x for x in c.src if x not in c.srcC or True]
            a_b = parse_reg(c.ops[1]) + parse_reg(c.ops[2])
            if overlap(p.dst, a_b): need = max(need, {4: 8, 8: 12}[n])
            if overlap(p.dst, c.dst) and c.srcC != p.dst and not overlap(p.dst, c.srcC): need = max(need, {4: 6, 8: 10}[n])
        elif c.kind in ("valu", "vmem", "ds"):
            if overlap(p.dst, c.src) or overlap(p.dst, c.dst): need = max(need, {4: 8, 8: 12}[n])
        if c.kind == "valu" and overlap(p.srcC, c.dst): need = max(need, {4: 3, 8: 7}[n])
    if p.kind == "vmem" and "store" in p.op and ("x4" in p.op or "x3" in p.op):
        data = parse_reg(p.ops[0]) if p.op.startswith("buffer") else parse_reg(p.ops[1])
        if overlap(data, c.dst): need = max(need, 2 if c.kind == "valu" else 1)
    if p.kind == "ds" and p.op in ("ds_write_b128", "ds_write_b96"):
        pass
    if p.kind == "salu" and ("s", "m0") in p.dst:
        if (c.kind in ("vmem", "ds")) and ("s", "m0") in c.src: need = max(need, 1)
    return need

MAXST = 20

class Asm:
    def __init__(self):
        self.lines = []
        self.uid = 0
    def emit(self, t): self.lines.append(t)
    def c(self, t): self.lines.append("    ; " + t)
    def label(self, name): self.lines.append(name + ":")
    def newlabel(self, base="L"):
        self.uid += 1
        return f"{base}_{self.uid}"
    def __getattr__(self, name):
        if name.startswith("_"): raise AttributeError(name)
        def f(*args, m=""):
            a = ", ".join(str(x) for x in args)
            self.lines.append(f"    {name} {a}" + (f" {m}" if m else ""))
        return f
    def text(self): return "\n".join(self.lines) + "\n"

def fix_hazards(lines, verbose=False):
    changed = True; total = 0; it = 0
    while changed:
        it += 1
        changed = False
        ins = [Ins(l) for l in lines]
        labels = {}
        for i, x in enumerate(ins):
            if x.label: labels[x.label] = i
        inserts = {}
        for i, p in enumerate(ins):
            if p.kind not in ("valu", "mfma", "vmem", "salu"): continue
            if p.kind == "salu" and ("s", "m0") not in p.dst: continue
            if p.kind == "vmem" and "store" not in p.op: continue
            stack = [(i + 1, 0)]
            if p.target is not None: continue
            seen = set()
            while stack:
                j, st = stack.pop()
                while j < len(ins) and st < MAXST:
                    if (j, st) in seen: break
                    seen.add((j, st))
                    c = ins[j]
                    if c.kind in ("none", "label"): j += 1; continue
                    need = required(p, c)
                    if need > st:
                        inserts[j] = max(inserts.get(j, 0), need - st)
                        break
                    if c.op == "s_endpgm": break
                    st += c.states()
                    if c.target is not None:
                        if c.target in labels: stack.append((labels[c.target], st))
                        if c.op == "s_branch": break
                    j += 1
        if inserts:
            changed = True
            out = []
            for i, l in enumerate(lines):
                if i in inserts:
                    n = inserts[i]; total += n
                    if verbose: print(f"hazard: {n} states before line: {l.strip()}")
                    while n > 0:
                        k = min(n, 16); out.append(f"    s_nop {k-1}"); n -= k
                out.append(l)
            lines = out
        if it > 50: raise RuntimeError("hazard fixing did not converge")
    return lines, total

def kernel_text(name, body_lines):
    return [f".globl {name}", ".p2align 8", f".type {name},@function", f"{name}:"] + body_lines

def descriptor(name, vgpr, sgpr, accum=None):
    acc = accum if accum is not None else ((vgpr + 3) // 4) * 4
    return f""".p2align 6
.amdhsa_kernel {name}
  .amdhsa_next_free_vgpr {vgpr}
  .amdhsa_next_free_sgpr {sgpr}
  .amdhsa_accum_offset {acc}
  .amdhsa_group_segment_fixed_size 0
  .amdhsa_kernarg_size 128
  .amdhsa_user_sgpr_count 2
  .amdhsa_user_sgpr_kernarg_segment_ptr 1
  .amdhsa_system_sgpr_workgroup_id_x 1
  .amdhsa_float_denorm_mode_32 3
.end_amdhsa_kernel
"""
```

```python
import sys
from common import *
import p0, p1
HEADER = open("recurrent_scan__ssm_conv_s4__swiglu_ffn__prompt.s.ref").read().split("; Override launch")[0]
def build(kernels, path):
    txt = HEADER
    for name, g, grid, block, lds in kernels:
        txt += f"; @launch kernel={name} grid=({grid},1,1) block=({block},1,1) lds={lds}\n"
    txt += '.amdgcn_target "amdgcn-amd-amdhsa--gfx950"\n.text\n'
    descs = ""; done = set()
    for name, g, grid, block, lds in kernels:
        if name in done: continue
        done.add(name)
        a, nv, ns = g(name)
        lines, nn = fix_hazards(a.lines)
        print(f"{name}: {len(lines)} lines, vgpr {nv}, sgpr {ns}, nops inserted {nn}", file=sys.stderr)
        txt += "\n".join(kernel_text(name, lines)) + "\n"
        descs += descriptor(name, nv, ns)
    txt += '.section .rodata,"a"\n' + descs
    open(path, "w").write(txt)
if __name__ == "__main__":
    for var in sys.argv[1:]:
        build([("p0_kernel", p0.gen_p0, 256, 256, 256), ("p1_kernel", lambda n: p1.gen_p1(n, stamps=True, variant=var), 256, 512, p1.LDS_P1)], f"t_p1_{var}.s")
```

```python
from asmlib import *

KA = dict(x=0, A_re=8, A_im=16, B_re=24, B_im=32, C_re=40, C_im=48, log_dt=56, Dskip=64, B_x=72,
          wg=80, wu=88, wd=96, out=104, dbg=112, ws=120)
WS_XNT = 0x000000
WS_STATS = 0x200000
WS_CSP = 0x210000
WS_HF = 0x300000
WS_ST = 0xA00000
WS_FLAGS = 0xC00000
WS_SIZE = 0xD00000

SRD3 = 0x00020000

def srd(a, sreg, ptr_lo, nbytes):
    a.s_mov_b32(s(sreg), s(ptr_lo))
    a.s_and_b32(s(sreg + 1), s(ptr_lo + 1), 0xffff)
    a.s_mov_b32(s(sreg + 2), hex(nbytes))
    a.s_mov_b32(s(sreg + 3), hex(SRD3))

def bf16_round(a, dst, src):
    a.v_cvt_pk_bf16_f32(v(dst), v(src), v(src))
    a.v_lshlrev_b32(v(dst), 16, v(dst))

def wave_sum_dpp(a, regs):
    for ctl in ["row_shr:1", "row_shr:2", "row_shr:4", "row_shr:8"]:
        for r in regs: a.v_add_f32_dpp(v(r), v(r), v(r), m=f"{ctl} row_mask:0xf bank_mask:0xf")
    for r in regs: a.v_add_f32_dpp(v(r), v(r), v(r), m="row_bcast:15 row_mask:0xa bank_mask:0xf")
    for r in regs: a.v_add_f32_dpp(v(r), v(r), v(r), m="row_bcast:31 row_mask:0xc bank_mask:0xf")

def f32hex(x):
    import struct
    return hex(struct.unpack("<I", struct.pack("<f", x))[0])

WS_DBG = 0xC80000
STAMP_S0 = 64
class Stamps:
    def __init__(self, a, enabled, kidx):
        self.a = a; self.en = enabled; self.kidx = kidx
    def stamp(self, i):
        if not self.en: return
        if getattr(self, "cyc", False): self.a.s_memtime(s(STAMP_S0 + 2 * i, 2))
        else: self.a.s_memrealtime(s(STAMP_S0 + 2 * i, 2))
    def flush(self, n, sB, sWave, rWS, vtmp, stmp):
        if not self.en: return
        a = self.a
        a.s_waitcnt("lgkmcnt(0)")
        a.s_lshl_b32(s(stmp), s(sB), 3)
        a.s_add_u32(s(stmp), s(stmp), s(sWave))
        a.s_lshl_b32(s(stmp), s(stmp), 6)
        a.s_add_u32(s(stmp), s(stmp), WS_DBG + self.kidx * 256 * 8 * 64)
        a.v_mov_b32(v(vtmp), 0)
        a.s_mov_b64("exec", 1)
        for i in range(n):
            a.v_mov_b32(v(vtmp + 1), s(STAMP_S0 + 2 * i))
            a.buffer_store_dword(v(vtmp + 1), v(vtmp), s(rWS, 4), s(stmp), m=f"offen offset:{4 * i}")
        a.s_mov_b64("exec", -1)
```

```python
from common import *
import math
LOG2E = 1.4426950408889634
PITCH = 288
TAB_W = 17 * PITCH + 16 * PITCH
KR_COPY = 4160
KR_CH = 2 * KR_COPY
U_CH = 4608

def cmul(a, d, x, y):
    a.v_pk_mul_f32(v(d, 2), v(x, 2), v(y, 2), m="op_sel_hi:[1,0]")
    a.v_pk_fma_f32(v(d, 2), v(x, 2), v(y, 2), v(d, 2), m="op_sel:[1,1,0] op_sel_hi:[0,1,1] neg_lo:[1,0,0]")

def direct(a, d, vAl, vBe, e, t0, conj=False):
    a.v_mul_f32(v(t0), float(e) if e in (1, 2, 4) else f32hex(float(e)), v(vAl))
    a.v_mul_f32(v(t0 + 1), float(e) if e in (1, 2, 4) else f32hex(float(e)), v(vBe))
    a.v_exp_f32(v(t0), v(t0))
    a.v_fract_f32(v(t0 + 1), v(t0 + 1))
    a.v_cos_f32(v(t0 + 2), v(t0 + 1))
    a.v_sin_f32(v(t0 + 1), v(t0 + 1))
    a.v_mul_f32(v(d), v(t0), v(t0 + 2))
    if conj: a.v_mul_f32(v(d + 1), v(t0), "-" + v(t0 + 1), m="") if False else a.emit(f"    v_mul_f32_e64 {v(d+1)}, {v(t0)}, -{v(t0+1)}")
    else: a.v_mul_f32(v(d + 1), v(t0), v(t0 + 1))

def rne_pow2(a, dst, x, r, t):
    a.v_bfe_u32(v(t), v(x), r, 1)
    a.v_add_u32(v(dst), v(x), v(t))
    a.v_add_u32(v(dst), (1 << (r - 1)) - 1, v(dst))
    a.v_and_b32(v(dst), hex((~((1 << r) - 1)) & 0xffffffff), v(dst))

def gen_cv_body(a, V, S, P, lds0, sH, sB, vLane, sregs, standalone=True, store_mods=""):
    (rWS, sT0, sT1, sT2, sCH, sD, sMASK, sTab, sKR, sU) = sregs
    L_TAB = lds0; L_KR = L_TAB + 4 * TAB_W; L_U = L_KR + 2 * KR_CH; L_END = L_U + 2 * U_CH
    vT = V.alloc(); vT2 = V.alloc(); vT3 = V.alloc(); vT4 = V.alloc()
    a.s_and_b32(s(sT0), s(sB), 7); a.s_lshl_b32(s(sT0), s(sT0), 5)
    a.s_lshr_b32(s(sT1), s(sB), 3); a.s_add_u32(s(sT0), s(sT0), s(sT1))
    a.s_lshr_b32(s(sCH), s(sH), 1)
    a.s_lshl_b32(s(sD), s(sT0), 1); a.s_add_u32(s(sD), s(sD), s(sCH))
    a.s_mul_i32(s(sTab), s(sH), TAB_W); a.s_add_u32(s(sTab), s(sTab), L_TAB)
    a.s_mul_i32(s(sKR), s(sCH), KR_CH); a.s_add_u32(s(sKR), s(sKR), L_KR)
    a.s_mul_i32(s(sU), s(sCH), U_CH); a.s_add_u32(s(sU), s(sU), L_U)
    vP = V.alloc(12, 2)
    vLd = V.alloc(2)
    a.s_lshl_b32(s(sT0), s(sD), 8)
    a.v_lshlrev_b32(v(vT), 1, v(vLane))
    a.v_add_u32(v(vT), s(sT0), v(vT))
    names = ["A_re", "A_im", "B_re", "B_im", "C_re", "C_im"]
    for hf in range(2):
        for i, nm in enumerate(names):
            a.global_load_ushort(v(vP + 6 * hf + i), v(vT), s(P[nm], 2), m=f"offset:{128 * hf}")
    a.s_lshl_b32(s(sT0), s(sD), 1)
    a.v_mov_b32(v(vT2), s(sT0))
    a.global_load_ushort(v(vLd), v(vT2), s(P["log_dt"], 2))
    a.global_load_ushort(v(vLd + 1), v(vT2), s(P["Dskip"], 2))
    vU = V.alloc(8, 4)
    a.s_and_b32(s(sT0), s(sH), 1); a.s_lshl_b32(s(sT0), s(sT0), 20)
    a.s_lshl_b32(s(sT1), s(sD), 4); a.s_add_u32(s(sT0), s(sT0), s(sT1))
    a.s_add_u32(s(sT0), s(sT0), WS_XNT)
    a.s_add_u32(s(sT1), s(sT0), 64 * 8192)
    a.v_lshlrev_b32(v(vT3), 13, v(vLane))
    a.buffer_load_dwordx4(v(vU, 4), v(vT3), s(rWS, 4), s(sT0), m="offen " + store_mods)
    a.buffer_load_dwordx4(v(vU + 4, 4), v(vT3), s(rWS, 4), s(sT1), m="offen " + store_mods)
    vZ = V.alloc(4, 4)
    for i in range(4): a.v_mov_b32(v(vZ + i), 0)
    a.v_lshlrev_b32(v(vT4), 4, v(vLane))
    a.s_and_b32(s(sT0), s(sH), 1)
    a.s_cmp_eq_u32(s(sT0), 0)
    lz = a.newlabel("CV_NZ")
    a.s_cbranch_scc0(lz)
    a.v_add_u32(v(vT2), s(sU), v(vT4))
    a.s_mov_b64("exec", "0xffffffff")
    a.ds_write_b128(v(vT2), v(vZ, 4))
    a.v_add_u32(v(vT2), s(sKR), v(vT4))
    a.s_mov_b64("exec", "0xf")
    a.ds_write_b128(v(vT2), v(vZ, 4), m="offset:4096")
    a.ds_write_b128(v(vT2), v(vZ, 4), m=f"offset:{KR_COPY + 4096}")
    a.s_mov_b64("exec", -1)
    a.label(lz)
    a.s_waitcnt("vmcnt(2)")
    vDt = V.alloc(); vDsk = V.alloc()
    a.v_lshlrev_b32(v(vDt), 16, v(vLd))
    a.v_mul_f32(v(vDt), f32hex(LOG2E), v(vDt))
    a.v_exp_f32(v(vDt), v(vDt))
    a.v_lshlrev_b32(v(vDsk), 16, v(vLd + 1))
    bf16_round(a, vDt, vDt)
    for i in range(12): a.v_lshlrev_b32(v(vP + i), 16, v(vP + i))
    V.free(vLd, 2)
    S.stamp(1)
    a.s_waitcnt("vmcnt(0)")
    a.s_and_b32(s(sT0), s(sH), 1); a.s_lshl_b32(s(sT0), s(sT0), 11)
    a.s_add_u32(s(sT0), s(sT0), s(sU))
    a.v_add_u32(v(vT2), s(sT0), v(vT4))
    a.ds_write_b128(v(vT2), v(vU, 4), m="offset:512")
    a.ds_write_b128(v(vT2), v(vU + 4, 4), m="offset:1536")
    V.free(vU, 8); V.free(vZ, 4)
    vWr = V.alloc()
    a.v_lshlrev_b32(v(vWr), 2, v(vLane)); a.v_add_u32(v(vWr), s(sTab), v(vWr))
    vI = V.alloc(); vKG16 = V.alloc()
    a.v_and_b32(v(vI), 15, v(vLane))
    a.v_lshrrev_b32(v(vKG16), 4, v(vLane)); a.v_lshlrev_b32(v(vKG16), 4, v(vKG16))
    a.v_add_u32(v(vKG16), s(sTab), v(vKG16))
    vGr = V.alloc()
    a.v_mul_u32_u24(v(vGr), PITCH, v(vI)); a.v_add_u32(v(vGr), v(vGr), v(vKG16))
    vAl, vBe = V.alloc(), V.alloc()
    vCB = V.alloc(2, 2); vW = V.alloc(2, 2); vG = V.alloc(2, 2); vG2 = V.alloc(2, 2); vTm = V.alloc(4, 2); vPk = V.alloc(2)
    vE = V.alloc(34, 2)
    vAcc = V.alloc(24, 4)
    vAf = V.alloc(32, 4); vBf = V.alloc(16, 4)
    vEr = V.alloc(6)
    GOFS = 17 * PITCH
    def setup_half(hf):
        p = vP + 6 * hf
        a.v_mul_f32(v(vAl), v(vDt), v(p)); a.v_mul_f32(v(vBe), v(vDt), v(p + 1))
        a.v_mul_f32(v(vAl), f32hex(LOG2E), v(vAl)); a.v_mul_f32(v(vBe), f32hex(1.0 / (2 * math.pi)), v(vBe))
        a.v_mul_f32(v(vTm), v(vDt), v(p + 2)); a.v_mul_f32(v(vTm + 1), v(vDt), v(p + 3))
        cmul(a, vCB, p + 4, vTm) if (p + 4) % 2 == 0 else None
        assert (p + 4) % 2 == 0
    def put(row_off, src):
        k = put.k; put.k ^= 1
        a.v_cvt_pk_bf16_f32(v(vPk + k), v(src), v(src + 1))
        a.ds_write_b32(v(vWr), v(vPk + k), m=f"offset:{row_off}")
    put.k = 0
    def gchain(base_e, step_e, first_is_cb):
        direct(a, vW, vAl, vBe, step_e, vTm)
        if first_is_cb:
            a.v_mov_b32(v(vG), v(vCB)); a.v_mov_b32(v(vG + 1), v(vCB + 1))
        else:
            direct(a, vG2, vAl, vBe, base_e, vTm)
            cmul(a, vG, vCB, vG2)
        cur, nxt = vG, vG2
        for i in range(16):
            put(GOFS + i * PITCH, cur)
            if i < 15:
                cmul(a, nxt, cur, vW); cur, nxt = nxt, cur
    def mfma_tiles(tiles, first):
        for p in range(4): a.ds_read_b128(v(vBf + 4 * p, 4), v(vGr), m=f"offset:{GOFS + 64 * p}")
        for n_, (ai, ei) in enumerate(tiles):
            af = vAf + 16 * (n_ % 2)
            for p in range(4): a.ds_read_b128(v(af + 4 * p, 4), v(vEr + ei), m=f"offset:{64 * p}")
            a.s_waitcnt("lgkmcnt(0)")
            for p in range(4):
                acc = v(vAcc + 4 * ai, 4)
                a.v_mfma_f32_16x16x32_bf16(acc, v(af + 4 * p, 4), v(vBf + 4 * p, 4), 0 if (first and p == 0) else acc)
    lB = a.newlabel("CV_PARTB"); lJ = a.newlabel("CV_JOIN")
    a.s_and_b32(s(sT0), s(sH), 1); a.s_cmp_eq_u32(s(sT0), 1)
    a.s_cbranch_scc1(lB)
    a.v_mul_u32_u24(v(vEr), PITCH, v(vI)); a.v_add_u32(v(vEr), v(vEr), v(vKG16))
    rne_pow2(a, vT, vI, 1, vT2)
    a.v_mul_u32_u24(v(vEr + 1), PITCH, v(vT)); a.v_add_u32(v(vEr + 1), v(vEr + 1), v(vKG16))
    for hf in range(2):
        setup_half(hf)
        a.v_mov_b32(v(vPk), "0x3f80"); a.ds_write_b32(v(vWr), v(vPk), m="offset:0")
        direct(a, vE + 2, vAl, vBe, 1, vTm, conj=True)
        put(PITCH, vE + 2)
        for e in range(2, 17):
            if e % 2 == 0: cmul(a, vE + 2 * e, vE + e, vE + e)
            else: cmul(a, vE + 2 * e, vE + 2 * (e - 1), vE + 2)
            put(e * PITCH, vE + 2 * e)
        gchain(0, 16, True)
        a.s_waitcnt("lgkmcnt(0)")
        mfma_tiles([(0, 0)], hf == 0)
        gchain(256, 16, False)
        a.s_waitcnt("lgkmcnt(0)")
        mfma_tiles([(1, 1)], hf == 0)
    tilesA = [(0, lambda: (0, 16)), (1, lambda: (256, 16))]
    def write_tiles(tl):
        a.v_lshrrev_b32(v(vT3), 4, v(vLane)); a.v_lshlrev_b32(v(vT3), 2, v(vT3))
        for (ai, base, step, sub) in tl:
            a.v_mul_u32_u24(v(vT), step, v(vI)); a.v_add_u32(v(vT), v(vT), v(vT3))
            a.v_lshlrev_b32(v(vT), 1, v(vT))
            a.v_sub_u32(v(vT), s(sKR), v(vT))
            c = base + 16 * sub
            acc = vAcc + 4 * ai
            a.v_cvt_pk_bf16_f32(v(vTm), v(acc + 3), v(acc + 2))
            a.v_cvt_pk_bf16_f32(v(vTm + 1), v(acc + 1), v(acc))
            a.v_alignbit_b32(v(vTm + 2), v(vTm + 1), v(vTm), 16)
            a.ds_write_b64(v(vT), v(vTm, 2), m=f"offset:{KR_COPY + 2 * (2044 - c)}")
            a.ds_write_b32(v(vT), v(vTm + 2), m=f"offset:{2 * (2046 - c)}")
            a.ds_write_b16(v(vT), v(vTm), m=f"offset:{2 * (2045 - c)}")
            a.ds_write_b16_d16_hi(v(vT), v(vTm + 1), m=f"offset:{2 * (2048 - c)}")
    write_tiles([(0, 0, 16, 0), (1, 256, 16, 0)])
    a.s_branch(lJ)
    a.label(lB)
    for sub in range(2):
        a.v_add_u32(v(vT3), 16 * sub, v(vI)); rne_pow2(a, vT, vT3, 2, vT2)
        a.v_lshrrev_b32(v(vT), 2, v(vT))
        a.v_mul_u32_u24(v(vEr + sub), PITCH, v(vT)); a.v_add_u32(v(vEr + sub), v(vEr + sub), v(vKG16))
    for sub in range(4):
        a.v_add_u32(v(vT3), 16 * sub, v(vI)); rne_pow2(a, vT, vT3, 3, vT2)
        a.v_lshrrev_b32(v(vT2), 3, v(vT)); a.v_add_u32(v(vT2), 4, v(vT2)); a.v_lshrrev_b32(v(vT), 2, v(vT))
        a.v_min_u32(v(vT), v(vT), v(vT2))
        a.v_mul_u32_u24(v(vEr + 2 + sub), PITCH, v(vT)); a.v_add_u32(v(vEr + 2 + sub), v(vEr + 2 + sub), v(vKG16))
    for hf in range(2):
        setup_half(hf)
        a.v_mov_b32(v(vPk), "0x3f80"); a.ds_write_b32(v(vWr), v(vPk), m="offset:0")
        R = lambda e: vE + 2 * (e // 4)
        row = lambda e: min(e // 4, 4 + e // 8)
        direct(a, R(4), vAl, vBe, 4, vTm, conj=True); put(row(4) * PITCH, R(4))
        for (e, x, y) in [(8, 4, 4), (12, 8, 4), (16, 8, 8), (20, 16, 4), (24, 12, 12), (28, 24, 4), (32, 16, 16), (40, 20, 20), (48, 24, 24), (56, 28, 28), (64, 32, 32)]:
            cmul(a, R(e), R(x), R(y)); put(row(e) * PITCH, R(e))
        gchain(512, 32, False)
        a.s_waitcnt("lgkmcnt(0)")
        mfma_tiles([(0, 0), (1, 1)], hf == 0)
        gchain(1024, 64, False)
        a.s_waitcnt("lgkmcnt(0)")
        mfma_tiles([(2, 2), (3, 3), (4, 4), (5, 5)], hf == 0)
    write_tiles([(0, 512, 32, 0), (1, 512, 32, 1)] + [(2 + i, 1024, 64, i) for i in range(4)])
    a.label(lJ)
    a.s_waitcnt("lgkmcnt(0)")
    S.stamp(2)
    a.s_barrier()
    for r_, n_ in ((vP, 12), (vAl, 1), (vBe, 1), (vCB, 2), (vW, 2), (vG, 2), (vG2, 2), (vPk, 2), (vE, 34), (vAcc, 24), (vAf, 32), (vBf, 16), (vEr, 6), (vWr, 1), (vGr, 1), (vDt, 1)): V.free(r_, n_)
    vY = V.alloc(32, 4); vA = V.alloc(32, 4); vBq = V.alloc(32, 4)
    vAa = V.alloc(4); vBa = V.alloc()
    a.v_and_b32(v(vT), 1, v(vI)); a.v_add_u32(v(vT2), v(vI), v(vT))
    a.v_lshrrev_b32(v(vT3), 4, v(vLane)); a.v_lshlrev_b32(v(vT3), 3, v(vT3))
    a.v_add_u32(v(vT2), v(vT2), v(vT3)); a.v_sub_u32(v(vT2), 2056, v(vT2)); a.v_lshlrev_b32(v(vT2), 1, v(vT2))
    a.v_mul_u32_u24(v(vT), KR_COPY, v(vT)); a.v_add_u32(v(vT2), v(vT2), v(vT))
    a.s_and_b32(s(sT0), s(sH), 1); a.s_lshl_b32(s(sT0), s(sT0), 8)
    a.s_sub_u32(s(sT1), s(sKR), s(sT0))
    a.v_add_u32(v(vT2), s(sT1), v(vT2))
    for k in range(4): a.v_subrev_u32(v(vAa + k), 512 * (2 * k + 1), v(vT2))
    a.v_lshlrev_b32(v(vT), 5, v(vI)); a.v_lshlrev_b32(v(vT3), 1, v(vT3))
    a.v_sub_u32(v(vT), v(vT), v(vT3))
    a.s_sub_u32(s(sT1), s(sU), s(sT0)); a.s_add_u32(s(sT1), s(sT1), 528)
    a.v_add_u32(v(vBa), s(sT1), v(vT))
    a.s_mov_b32(s(sT2), 0)
    for i in range(32): a.v_mov_b32(v(vY + i), 0)
    a.label("CV_LOOP")
    for s1 in range(8):
        k = s1 // 2; o = 128 if s1 % 2 == 0 else 0
        a.ds_read2_b32(v(vA + 4 * s1, 2), v(vAa + k), m=f"offset0:{o} offset1:{o + 1}")
        a.ds_read2_b32(v(vA + 4 * s1 + 2, 2), v(vAa + k), m=f"offset0:{o + 2} offset1:{o + 3}")
        a.ds_read_b128(v(vBq + 4 * s1, 4), v(vBa), m=f"offset:{512 * s1}")
    for k in range(4): a.v_subrev_u32(v(vAa + k), 64, v(vAa + k))
    a.v_subrev_u32(v(vBa), 64, v(vBa))
    a.s_waitcnt("lgkmcnt(0)")
    for tot in range(8):
        for s1 in range(tot + 1):
            acc = v(vY + 4 * tot, 4)
            a.v_mfma_f32_16x16x32_bf16(acc, v(vA + 4 * s1, 4), v(vBq + 4 * (tot - s1), 4), acc)
    a.s_add_u32(s(sT2), s(sT2), 1); a.s_cmp_lt_u32(s(sT2), 4); a.s_cbranch_scc1("CV_LOOP")
    S.stamp(3)
    a.v_lshlrev_b32(v(vT), 4, v(vLane)); a.v_add_u32(v(vT), s(sTab), v(vT))
    l1 = a.newlabel("CV_R1"); l2 = a.newlabel("CV_R2")
    a.s_and_b32(s(sT0), s(sH), 1); a.s_cmp_eq_u32(s(sT0), 1); a.s_cbranch_scc1(l1)
    a.s_nop(7)
    for t in range(4): a.ds_write_b128(v(vT), v(vY + 16 + 4 * t, 4), m=f"offset:{1024 * t}")
    a.s_branch(l2)
    a.label(l1)
    a.s_nop(7)
    for t in range(4): a.ds_write_b128(v(vT), v(vY + 4 * t, 4), m=f"offset:{1024 * t}")
    for i in range(16): a.v_mov_b32(v(vY + i), v(vY + 16 + i))
    a.label(l2)
    a.s_waitcnt("lgkmcnt(0)")
    a.s_barrier()
    a.s_xor_b32(s(sT0), s(sH), 1); a.s_mul_i32(s(sT0), s(sT0), TAB_W); a.s_add_u32(s(sT0), s(sT0), L_TAB)
    a.v_lshlrev_b32(v(vT), 4, v(vLane)); a.v_add_u32(v(vT), s(sT0), v(vT))
    for t in range(4): a.ds_read_b128(v(vA + 4 * t, 4), v(vT), m=f"offset:{1024 * t}")
    a.s_and_b32(s(sT0), s(sH), 1); a.s_lshl_b32(s(sT0), s(sT0), 11)
    a.v_lshlrev_b32(v(vT2), 5, v(vI))
    a.v_lshrrev_b32(v(vT3), 4, v(vLane)); a.v_lshlrev_b32(v(vT3), 3, v(vT3))
    a.v_add_u32(v(vT2), v(vT2), v(vT3))
    a.s_add_u32(s(sT1), s(sT0), s(sU))
    a.v_add_u32(v(vT3), s(sT1), v(vT2))
    for t in range(4): a.ds_read_b64(v(vBq + 2 * t, 2), v(vT3), m=f"offset:{512 + 512 * t}")
    a.s_waitcnt("lgkmcnt(0)")
    for i in range(16): a.v_add_f32(v(vY + i), v(vY + i), v(vA + i))
    for t in range(4):
        y = vY + 4 * t; u = vBq + 2 * t; tm = vA + 8 * (t % 2)
        a.v_cvt_pk_bf16_f32(v(tm), v(y), v(y + 1)); a.v_cvt_pk_bf16_f32(v(tm + 1), v(y + 2), v(y + 3))
        for q in range(2):
            a.v_lshlrev_b32(v(y + 2 * q), 16, v(tm + q)); a.v_and_b32(v(y + 2 * q + 1), s(sMASK), v(tm + q))
            a.v_lshlrev_b32(v(tm + 2 + 2 * q), 16, v(u + q)); a.v_and_b32(v(tm + 3 + 2 * q), s(sMASK), v(u + q))
        for q in range(4): a.v_mul_f32(v(tm + 2 + q), v(tm + 2 + q), v(vDsk))
        a.v_cvt_pk_bf16_f32(v(tm), v(tm + 2), v(tm + 3)); a.v_cvt_pk_bf16_f32(v(tm + 1), v(tm + 4), v(tm + 5))
        for q in range(2):
            a.v_lshlrev_b32(v(tm + 2 + 2 * q), 16, v(tm + q)); a.v_and_b32(v(tm + 3 + 2 * q), s(sMASK), v(tm + q))
        for q in range(4): a.v_add_f32(v(y + q), v(y + q), v(tm + 2 + q))
        a.v_cvt_pk_bf16_f32(v(vBq + 16 + 2 * t), v(y), v(y + 1)); a.v_cvt_pk_bf16_f32(v(vBq + 16 + 2 * t + 1), v(y + 2), v(y + 3))
    a.s_lshl_b32(s(sT1), s(sD), 12); a.s_add_u32(s(sT1), s(sT1), s(sT0)); a.s_add_u32(s(sT1), s(sT1), WS_ST)
    for t in range(4):
        a.buffer_store_dwordx2(v(vBq + 16 + 2 * t, 2), v(vT2), s(rWS, 4), s(sT1), m=f"offen offset:{512 * t} {store_mods}")
    return L_END

def gen_cv(name="cv_kernel", stamps=False):
    a = Asm()
    S = Stamps(a, stamps, 2)
    S.stamp(0)
    sB = 2
    P = dict(A_re=4, A_im=6, B_re=8, B_im=10, C_re=12, C_im=14, log_dt=16, Dskip=18)
    sWS = 20; rWS = 24
    sH = 28
    a.s_cmp_ge_u32(s(sB), 256); a.s_cbranch_scc1("CV_END")
    a.s_load_dwordx4(s(4, 4), s(0, 2), KA["A_re"]); a.s_load_dwordx4(s(8, 4), s(0, 2), KA["B_re"])
    a.s_load_dwordx4(s(12, 4), s(0, 2), KA["C_re"]); a.s_load_dwordx4(s(16, 4), s(0, 2), KA["log_dt"])
    a.s_load_dwordx2(s(sWS, 2), s(0, 2), KA["ws"])
    V = Alloc(256, 1)
    vLane = V.alloc()
    a.v_and_b32(v(vLane), 63, v(0)); a.v_lshrrev_b32(v(2), 6, v(0)); a.s_nop(0)
    a.v_readfirstlane_b32(s(sH), v(2))
    sMASK = 35
    a.s_mov_b32(s(sMASK), "0xffff0000")
    a.s_waitcnt("lgkmcnt(0)")
    srd(a, rWS, sWS, WS_SIZE)
    lend = gen_cv_body(a, V, S, P, 0, sH, sB, vLane, (rWS, 29, 30, 31, 32, 33, sMASK, 36, 37, 38))
    S.stamp(4)
    S.flush(5, sB, sH, rWS, 1, 29)
    a.label("CV_END")
    a.s_endpgm()
    gen_cv.lds = lend
    return a, V.hi, 100 if stamps else 48
```

```python
from common import *

def tile_map(a, sb, s_rb, s_cb, t0, t1):
    a.s_and_b32(s(t0), s(sb), 1)
    a.s_lshl_b32(s(t0), s(t0), 3)
    a.s_lshr_b32(s(t1), s(sb), 3)
    a.s_and_b32(s(s_rb), s(t1), 7)
    a.s_add_u32(s(s_rb), s(s_rb), s(t0))
    a.s_bfe_u32(s(t0), s(sb), (2 << 16) | 1)
    a.s_lshl_b32(s(t0), s(t0), 2)
    a.s_lshr_b32(s(s_cb), s(sb), 6)
    a.s_add_u32(s(s_cb), s(s_cb), s(t0))

def gen_p0(name="p0_kernel"):
    a = Asm()
    V = Alloc(128, 1, "v");
    sB = 2
    sX, sWG, sWU, sWS = 4, 8, 10, 6
    rX, rW, rWS = 12, 16, 20
    sRB, sCB, sH, sT0, sT1, sMASK = 24, 25, 26, 27, 28, 29
    sM0, sM1, sV0, sV1 = 30, 31, 32, 33
    sOff = 34
    a.s_cmp_ge_u32(s(sB), 256)
    a.s_cbranch_scc1("P0_END")
    a.s_load_dwordx2(s(sX, 2), s(0, 2), KA["x"])
    a.s_load_dwordx4(s(sWG, 4), s(0, 2), KA["wg"])
    a.s_load_dwordx2(s(sWS, 2), s(0, 2), KA["ws"])
    vLane = V.alloc(); vT = V.alloc(); vT2 = V.alloc()
    a.v_and_b32(v(vLane), 63, v(0))
    a.v_lshrrev_b32(v(vT), 6, v(0))
    a.s_nop(0)
    a.v_readfirstlane_b32(s(sH), v(vT))
    tile_map(a, sB, sRB, sCB, sT0, sT1)
    a.s_mov_b32(s(sMASK), "0xffff0000")
    a.s_waitcnt("lgkmcnt(0)")
    srd(a, rX, sX, 2048 * 512 * 2)
    a.s_cmp_ge_u32(s(sH), 2)
    a.s_cselect_b32(s(sT0), s(sWU), s(sWG))
    a.s_cselect_b32(s(sT1), s(sWU + 1), s(sWG + 1))
    a.s_mov_b32(s(rW), s(sT0)); a.s_and_b32(s(rW + 1), s(sT1), 0xffff)
    a.s_mov_b32(s(rW + 2), hex(512 * 1792 * 2)); a.s_mov_b32(s(rW + 3), hex(SRD3))
    srd(a, rWS, sWS, WS_SIZE)
    vRow = V.alloc(8, 4)
    vBlk = V.alloc(8, 4)
    vCs = V.alloc(16, 4)
    vO1 = V.alloc(); vO2 = V.alloc(); vO3 = V.alloc()
    a.s_lshl_b32(s(sT0), s(sB), 13)
    a.s_lshl_b32(s(sT1), s(sH), 11)
    a.s_add_u32(s(sOff), s(sT0), s(sT1))
    a.v_lshlrev_b32(v(vO1), 4, v(vLane))
    a.buffer_load_dwordx4(v(vRow, 4), v(vO1), s(rX, 4), s(sOff), m="offen")
    a.buffer_load_dwordx4(v(vRow + 4, 4), v(vO1), s(rX, 4), s(sOff), m="offen offset:1024")
    a.s_lshl_b32(s(sT1), s(sH), 8)
    a.s_add_u32(s(sOff + 1), s(sT0), s(sT1))
    a.s_add_u32(s(sOff + 2), s(sOff + 1), 4096)
    a.v_lshlrev_b32(v(vO2), 2, v(vLane))
    for r in range(8):
        a.buffer_load_dword(v(vBlk + r), v(vO2), s(rX, 4), s(sOff + 1 + r // 4), m=f"offen offset:{(r % 4) * 1024}")
    a.v_and_b32(v(vT), 7, v(vLane))
    a.v_min_u32(v(vT), 6, v(vT))
    a.v_lshlrev_b32(v(vT), 4, v(vT))
    a.v_lshrrev_b32(v(vT2), 3, v(vLane))
    a.s_movk_i32(s(sT0), 3584)
    a.v_mul_lo_u32(v(vT2), v(vT2), s(sT0))
    a.v_add_u32(v(vO3), v(vT), v(vT2))
    a.s_mul_i32(s(sT0), s(sRB), 32 * 3584)
    a.s_mul_i32(s(sT1), s(sCB), 224)
    a.s_add_u32(s(sT0), s(sT0), s(sT1))
    a.s_and_b32(s(sT1), s(sH), 1)
    a.s_mul_i32(s(sT1), s(sT1), 112)
    a.s_add_u32(s(sT0), s(sT0), s(sT1))
    for i in range(4):
        a.buffer_load_dwordx4(v(vCs + 4 * i, 4), v(vO3), s(rW, 4), s(sT0), m="offen")
        if i < 3: a.s_add_u32(s(sT0), s(sT0), 8 * 3584)
    a.s_waitcnt("vmcnt(12)")
    vF = V.alloc(16, 2)
    for r in range(2):
        for q in range(4):
            a.v_lshlrev_b32(v(vF + 8 * r + 2 * q), 16, v(vRow + 4 * r + q))
            a.v_and_b32(v(vF + 8 * r + 2 * q + 1), s(sMASK), v(vRow + 4 * r + q))
    vS = V.alloc(2)
    for r in range(2):
        a.v_add_f32(v(vS + r), v(vF + 8 * r), v(vF + 8 * r + 1))
        for q in range(2, 8): a.v_add_f32(v(vS + r), v(vS + r), v(vF + 8 * r + q))
    wave_sum_dpp(a, [vS, vS + 1])
    a.v_readlane_b32(s(sM0), v(vS), 63)
    a.v_readlane_b32(s(sM1), v(vS + 1), 63)
    vMean = V.alloc(2)
    a.v_mov_b32(v(vT), f32hex(1.0 / 512))
    a.v_mul_f32(v(vMean), s(sM0), v(vT))
    a.v_mul_f32(v(vMean + 1), s(sM1), v(vT))
    for r in range(2):
        for q in range(8): a.v_sub_f32(v(vF + 8 * r + q), v(vF + 8 * r + q), v(vMean + r))
        a.v_mul_f32(v(vS + r), v(vF + 8 * r), v(vF + 8 * r))
        for q in range(1, 8): a.v_fmac_f32(v(vS + r), v(vF + 8 * r + q), v(vF + 8 * r + q))
    wave_sum_dpp(a, [vS, vS + 1])
    a.v_readlane_b32(s(sV0), v(vS), 63)
    a.v_readlane_b32(s(sV1), v(vS + 1), 63)
    vVar = V.alloc(2); vSt = V.alloc(4, 2)
    a.v_mul_f32(v(vVar), s(sV0), v(vT))
    a.v_mul_f32(v(vVar + 1), s(sV1), v(vT))
    for r in range(2):
        bf16_round(a, vSt + 2 * r, vMean + r)
        bf16_round(a, vVar + r, vVar + r)
        a.v_add_f32(v(vVar + r), f32hex(1e-5), v(vVar + r))
        bf16_round(a, vVar + r, vVar + r)
        a.v_sqrt_f32(v(vVar + r), v(vVar + r))
        bf16_round(a, vVar + r, vVar + r)
        a.v_rcp_f32(v(vSt + 2 * r + 1), v(vVar + r))
    a.v_mov_b32(v(vT), s(sH))
    a.v_lshlrev_b32(v(vT), 4, v(vT))
    a.v_cmp_eq_u32("vcc", 0, v(vLane))
    a.s_and_saveexec_b64(s(36, 2), "vcc")
    a.ds_write_b128(v(vT), v(vSt, 4))
    a.s_lshl_b32(s(sT0), s(sB), 6)
    a.s_add_u32(s(sT0), s(sT0), WS_STATS)
    a.buffer_store_dwordx4(v(vSt, 4), v(vT), s(rWS, 4), s(sT0), m="offen")
    a.s_mov_b64("exec", s(36, 2))
    a.s_waitcnt("vmcnt(1)")
    vA = V.alloc(8, 2)
    for i in range(4):
        for q in range(4):
            src = vCs + 4 * i + q
            if i == 0:
                a.v_lshlrev_b32(v(vA + 2 * q), 16, v(src))
                a.v_and_b32(v(vA + 2 * q + 1), s(sMASK), v(src))
            else:
                a.v_lshlrev_b32(v(vT), 16, v(src))
                a.v_and_b32(v(vT2), s(sMASK), v(src))
                a.v_add_f32(v(vA + 2 * q), v(vA + 2 * q), v(vT))
                a.v_add_f32(v(vA + 2 * q + 1), v(vA + 2 * q + 1), v(vT2))
    for q in range(8): a.v_add_f32_dpp(v(vA + q), v(vA + q), v(vA + q), m="row_ror:8 row_mask:0xf bank_mask:0xf")
    vB = V.alloc(8)
    for q in range(8): a.v_mov_b32(v(vB + q), v(vA + q))
    for q in range(8): a.v_permlane16_swap_b32(v(vA + q), v(vB + q))
    for q in range(8): a.v_add_f32(v(vA + q), v(vA + q), v(vB + q))
    for q in range(8): a.v_mov_b32(v(vB + q), v(vA + q))
    for q in range(8): a.v_permlane32_swap_b32(v(vA + q), v(vB + q))
    for q in range(8): a.v_add_f32(v(vA + q), v(vA + q), v(vB + q))
    a.s_lshl_b32(s(sT0), s(sCB), 4)
    a.s_add_u32(s(sT0), s(sT0), s(sRB))
    a.s_mul_i32(s(sT0), s(sT0), 896)
    a.s_mul_i32(s(sT1), s(sH), 224)
    a.s_add_u32(s(sT0), s(sT0), s(sT1))
    a.s_add_u32(s(sT0), s(sT0), WS_CSP)
    a.v_lshlrev_b32(v(vT), 5, v(vLane))
    a.v_cmp_gt_u32("vcc", 7, v(vLane))
    a.s_and_saveexec_b64(s(36, 2), "vcc")
    a.buffer_store_dwordx4(v(vA, 4), v(vT), s(rWS, 4), s(sT0), m="offen")
    a.buffer_store_dwordx4(v(vA + 4, 4), v(vT), s(rWS, 4), s(sT0), m="offen offset:16")
    a.s_mov_b64("exec", s(36, 2))
    a.s_waitcnt("lgkmcnt(0)")
    a.s_barrier()
    vAll = V.alloc(16, 4)
    a.v_mov_b32(v(vT), 0)
    for q in range(4): a.ds_read_b128(v(vAll + 4 * q, 4), v(vT), m=f"offset:{16 * q}")
    a.s_waitcnt("lgkmcnt(0)")
    vN = V.alloc(16, 2)
    vD = V.alloc(2, 2)
    for r in range(8):
        m_ = vAll + 2 * r; r_ = vAll + 2 * r + 1
        a.v_lshlrev_b32(v(vD), 16, v(vBlk + r))
        a.v_and_b32(v(vD + 1), s(sMASK), v(vBlk + r))
        a.v_sub_f32(v(vD), v(vD), v(m_))
        a.v_sub_f32(v(vD + 1), v(vD + 1), v(m_))
        a.v_cvt_pk_bf16_f32(v(vT), v(vD), v(vD + 1))
        a.v_lshlrev_b32(v(vD), 16, v(vT))
        a.v_and_b32(v(vD + 1), s(sMASK), v(vT))
        a.v_mul_f32(v(vN + 2 * r), v(vD), v(r_))
        a.v_mul_f32(v(vN + 2 * r + 1), v(vD + 1), v(r_))
    vP = V.alloc(8, 4)
    for c in range(2):
        for q in range(4):
            a.v_cvt_pk_bf16_f32(v(vP + 4 * c + q), v(vN + 4 * q + c), v(vN + 4 * q + 2 + c))
    a.s_lshl_b32(s(sT0), s(sB), 13)
    a.s_lshl_b32(s(sT1), s(sH), 11)
    a.s_add_u32(s(sT0), s(sT0), s(sT1))
    a.v_lshlrev_b32(v(vT), 5, v(vLane))
    a.buffer_store_dwordx4(v(vP, 4), v(vT), s(rWS, 4), s(sT0), m="offen")
    a.buffer_store_dwordx4(v(vP + 4, 4), v(vT), s(rWS, 4), s(sT0), m="offen offset:16")
    a.label("P0_END")
    a.s_endpgm()
    return a, V.hi, 40
```

```python
from common import *
from p0 import tile_map

XOFF, GOFF, UOFF, SLOT = 0, 16384, 16384 + 15360 + 64, 16384 + 15360 + 64 + 15360
AUX_ST = 3 * SLOT
AUX_CS = AUX_ST + 1024
LDS_P1 = AUX_CS + 896
LOG2E = 1.4426950408889634

class VM:
    def __init__(self, a): self.a = a; self.n = 0
    def issue(self, k=1):
        self.n += k; return self.n - 1
    def wait(self, tok):
        left = self.n - 1 - tok
        assert left <= 63
        self.a.s_waitcnt(f"vmcnt({left})")

def gen_p1(name="p1_kernel", store_mods="", standalone=True, stamps=False, variant=""):
    a = Asm()
    S = Stamps(a, stamps, 1)
    S.cyc = 'cyc' in variant
    S.stamp(0)
    sB = 2
    sX, sWS, sWG, sWU = 4, 6, 8, 10
    rX, rG, rU, rWS = 12, 16, 20, 24
    sRB, sCB, sW, sT0, sT1, sT2, sT3 = 28, 29, 30, 31, 32, 33, 34
    a.s_cmp_ge_u32(s(sB), 256)
    a.s_cbranch_scc1("P1_END")
    a.s_load_dwordx2(s(sX, 2), s(0, 2), KA["x"])
    a.s_load_dwordx4(s(sWG, 4), s(0, 2), KA["wg"])
    a.s_load_dwordx2(s(sWS, 2), s(0, 2), KA["ws"])
    V = Alloc(256, 1)
    vLane = V.alloc(); vT = V.alloc(); vT2 = V.alloc(); vT3 = V.alloc()
    a.v_and_b32(v(vLane), 63, v(0))
    a.v_lshrrev_b32(v(vT), 6, v(0))
    a.s_nop(0)
    a.v_readfirstlane_b32(s(sW), v(vT))
    tile_map(a, sB, sRB, sCB, sT0, sT1)
    a.s_cmp_ge_u32(s(sW), 4)
    a.s_cbranch_scc1("P1_H")
    snap = V.snapshot()
    sWM, sWN, sCur, sNext, sCnt = 36, 37, 38, 39, 40
    a.s_and_b32(s(sWM), s(sW), 1)
    a.s_lshr_b32(s(sWN), s(sW), 1)
    vAcc = V.alloc(112, 4)
    setW = [V.alloc(28, 4), V.alloc(28, 4)]
    setX = [V.alloc(16, 4), V.alloc(16, 4)]
    vWb, vX0b, vX1b = V.alloc(), V.alloc(), V.alloc()
    vWc, vX1c, vWn, vX0n = V.alloc(), V.alloc(), V.alloc(), V.alloc()
    a.v_lshrrev_b32(v(vT), 4, v(vLane))
    a.v_lshlrev_b32(v(vT), 3, v(vT))
    a.v_bfe_u32(v(vT2), v(vLane), 2, 2)
    a.v_add_u32(v(vT), v(vT), v(vT2))
    a.v_mul_u32_u24(v(vWb), 240, v(vT))
    a.v_bfe_u32(v(vT), v(vLane), 1, 1)
    a.v_mul_u32_u24(v(vT), 15424, v(vT))
    a.v_add_u32(v(vWb), v(vWb), v(vT))
    a.v_and_b32(v(vT), 1, v(vLane))
    a.v_lshlrev_b32(v(vT), 3, v(vT))
    a.v_add_u32(v(vWb), v(vWb), v(vT))
    a.s_mul_i32(s(sT0), s(sWM), 112)
    a.s_add_u32(s(sT0), s(sT0), GOFF)
    a.v_add_u32(v(vWb), s(sT0), v(vWb))
    a.v_and_b32(v(vT), 15, v(vLane))
    a.v_lshrrev_b32(v(vT2), 1, v(vT))
    a.v_lshrrev_b32(v(vT3), 4, v(vLane))
    a.v_xor_b32(v(vT2), v(vT2), v(vT3))
    a.v_lshlrev_b32(v(vT2), 4, v(vT2))
    a.v_lshl_add_u32(v(vX0b), v(vT), 7, v(vT2))
    a.s_lshl_b32(s(sT0), s(sWN), 13)
    a.v_add_u32(v(vX0b), s(sT0), v(vX0b))
    a.v_xor_b32(v(vX1b), 64, v(vX0b))
    if "pf" in variant:
        vP = V.alloc(4); vPd = V.alloc(4)
        a.s_lshr_b32(s(sT0), s(sB), 6)
        a.s_lshl_b32(s(sT0), s(sT0), 5)
        a.s_lshl_b32(s(sT1), s(sW), 3)
        a.s_add_u32(s(sT0), s(sT0), s(sT1))
        a.s_lshl_b32(s(sT1), s(sRB), 7)
        a.s_add_u32(s(sT0), s(sT0), s(sT1))
        a.s_lshl_b32(s(sT2), s(sT0), 10)
        a.v_lshrrev_b32(v(vT), 3, v(vLane)); a.v_and_b32(v(vT2), 7, v(vLane))
        a.v_lshlrev_b32(v(vT2), 7, v(vT2))
        a.v_lshl_add_u32(v(vP), v(vT), 10, v(vT2))
        a.s_bfe_u32(s(sT0), s(sB), (3 << 16) | 3)
        a.s_lshl_b32(s(sT0), s(sT0), 6)
        a.s_lshl_b32(s(sT1), s(sWN), 5)
        a.s_add_u32(s(sT0), s(sT0), s(sT1))
        a.s_mul_i32(s(sT0), s(sT0), 3584)
        a.s_mul_i32(s(sT1), s(sCB), 224)
        a.s_add_u32(s(sT3), s(sT0), s(sT1))
        a.v_lshrrev_b32(v(vT), 1, v(vLane))
        a.s_movk_i32(s(sT0), 3584)
        a.v_mul_lo_u32(v(vT), v(vT), s(sT0))
        a.v_and_b32(v(vT2), 1, v(vLane))
        a.v_lshl_add_u32(v(vP + 1), v(vT2), 7, v(vT))
        a.v_add_u32(v(vP + 2), 220, v(vT))
        a.s_waitcnt("lgkmcnt(0)")
        srd(a, rX, sX, 2048 * 512 * 2)
        a.s_cmp_eq_u32(s(sWM), 1)
        a.s_cselect_b32(s(rG), s(sWU), s(sWG))
        a.s_cselect_b32(s(rG + 1), s(sWU + 1), s(sWG + 1))
        a.s_and_b32(s(rG + 1), s(rG + 1), 0xffff)
        a.s_mov_b32(s(rG + 2), hex(512 * 1792 * 2)); a.s_mov_b32(s(rG + 3), hex(SRD3))
        a.buffer_load_dword(v(vPd + 1), v(vP + 1), s(rG, 4), s(sT3), m="offen")
        a.buffer_load_dword(v(vPd + 2), v(vP + 2), s(rG, 4), s(sT3), m="offen")
        a.buffer_load_dword(v(vPd), v(vP), s(rX, 4), s(sT2), m="offen")
    for i in range(112): a.v_mov_b32(v(vAcc + i), 0)
    a.s_waitcnt("lgkmcnt(0)")
    srd(a, rWS, sWS, WS_SIZE)
    a.s_mov_b32(s(sCur), 0); a.s_mov_b32(s(sNext), SLOT); a.s_mov_b32(s(sCnt), 0)

    def reads(setidx, vW, vX, sub):
        out = []
        for nt in range(4):
            out.append(("ds_read_b128", v(setX[setidx] + 4 * nt, 4), v(vX), f"offset:{nt * 2048}"))
        for mt in range(7):
            for hf in range(2):
                out.append(("ds_read_b64_tr_b16", v(setW[setidx] + 4 * mt + 2 * hf, 2), v(vW), f"offset:{sub * 7680 + hf * 960 + mt * 16}"))
        return out
    def flat(rd):
        a.emit(f"    {rd[0]} {rd[1]}, {rd[2]} {rd[3]}")
    def substep(setidx, rds):
        k = 0
        for mt in range(7):
            for nt in range(4):
                acc = v(vAcc + (mt * 4 + nt) * 4, 4)
                if "nomfma" not in variant: a.v_mfma_f32_16x16x32_bf16(acc, v(setW[setidx] + 4 * mt, 4), v(setX[setidx] + 4 * nt, 4), acc)
                if k < len(rds) and "noread" not in variant: flat(rds[k])
                k += 1
    S.stamp(1)
    a.s_barrier()
    S.stamp(2)
    for rd in reads(0, vWb, vX0b, 0): flat(rd)
    a.label("P1_LOOP")
    a.v_add_u32(v(vWc), s(sCur), v(vWb))
    a.v_add_u32(v(vX1c), s(sCur), v(vX1b))
    a.v_add_u32(v(vWn), s(sNext), v(vWb))
    a.v_add_u32(v(vX0n), s(sNext), v(vX0b))
    a.s_waitcnt("lgkmcnt(0)")
    substep(0, reads(1, vWc, vX1c, 1))
    a.s_waitcnt("lgkmcnt(0)")
    a.s_barrier()
    substep(1, reads(0, vWn, vX0n, 0))
    a.s_mov_b32(s(sCur), s(sNext))
    a.s_add_u32(s(sNext), s(sNext), SLOT)
    a.s_cmp_eq_u32(s(sNext), 3 * SLOT)
    a.s_cselect_b32(s(sNext), 0, s(sNext))
    a.s_add_u32(s(sCnt), s(sCnt), 1)
    a.s_cmp_lt_u32(s(sCnt), 8)
    a.s_cbranch_scc1("P1_LOOP")
    a.s_waitcnt("lgkmcnt(0)")
    S.stamp(3)
    for st_ in setW: V.free(st_, 28)
    for st_ in setX: V.free(st_, 16)
    vCs = V.alloc(56, 4)
    vSt = V.alloc(4, 2)
    vC1 = V.alloc(4, 2)
    vOne = V.alloc(2, 2)
    a.v_bfe_u32(v(vT), v(vLane), 4, 1)
    a.v_lshlrev_b32(v(vT), 4, v(vT))
    a.s_mul_i32(s(sT0), s(sWM), 224)
    a.s_add_u32(s(sT0), s(sT0), AUX_CS)
    a.v_add_u32(v(vT), s(sT0), v(vT))
    for mat in range(2):
        for mt in range(7):
            a.ds_read_b128(v(vCs + (mat * 7 + mt) * 4, 4), v(vT), m=f"offset:{mat * 448 + mt * 32}")
    a.v_lshrrev_b32(v(vT2), 5, v(vLane))
    a.v_lshlrev_b32(v(vT2), 4, v(vT2))
    a.v_and_b32(v(vT3), 15, v(vLane))
    a.v_add_u32(v(vT2), v(vT2), v(vT3))
    a.v_lshlrev_b32(v(vT2), 3, v(vT2))
    a.s_lshl_b32(s(sT0), s(sWN), 9)
    a.s_add_u32(s(sT0), s(sT0), AUX_ST)
    a.v_add_u32(v(vT2), s(sT0), v(vT2))
    a.ds_read_b64(v(vSt, 2), v(vT2))
    a.ds_read_b64(v(vSt + 2, 2), v(vT2), m="offset:256")
    a.v_mov_b32(v(vOne), 1.0); a.v_mov_b32(v(vOne + 1), 1.0)
    vSO = V.alloc()
    a.v_lshrrev_b32(v(vT), 5, v(vLane))
    a.s_mov_b32(s(sT0), 57344)
    a.v_mul_lo_u32(v(vSO), v(vT), s(sT0))
    a.v_bfe_u32(v(vT), v(vLane), 4, 1)
    a.v_lshl_add_u32(v(vSO), v(vT), 8, v(vSO))
    a.v_lshl_add_u32(v(vSO), v(vT3), 4, v(vSO))
    a.s_lshl_b32(s(sT0), s(sRB), 3)
    a.s_lshl_b32(s(sT1), s(sWN), 2)
    a.s_add_u32(s(sT0), s(sT0), s(sT1))
    a.s_mul_i32(s(sT0), s(sT0), 57344)
    a.s_mul_i32(s(sT1), s(sCB), 7 * 512)
    a.s_add_u32(s(sT0), s(sT0), s(sT1))
    a.s_add_u32(s(sT2), s(sT0), WS_HF)
    a.s_add_u32(s(sT3), s(sT2), 2 * 57344)
    a.s_waitcnt("lgkmcnt(0)")
    for np_ in range(2):
        a.v_mul_f32(v(vC1 + 2 * np_), f32hex(-LOG2E), v(vSt + 2 * np_ + 1))
    vH = V.alloc(18, 2)
    tmp = [V.alloc(12, 2) for _ in range(2)]
    def bc(extra=""):
        return "op_sel_hi:[1,0,1]" + extra
    for np_ in range(2):
        nt0, nt1 = 2 * np_, 2 * np_ + 1
        mreg = v(vSt + 2 * np_, 2); c1 = v(vC1 + 2 * np_, 2)
        tiles = list(range(7))
        for g0 in range(0, 7, 2):
            grp = tiles[g0:g0 + 2]
            X = {mt: vAcc + (mt * 4 + nt0) * 4 for mt in grp}
            Y = {mt: vAcc + (mt * 4 + nt1) * 4 for mt in grp}
            T = {mt: tmp[i] for i, mt in enumerate(grp)}
            for mt in grp:
                for r in range(4): a.v_permlane32_swap_b32(v(X[mt] + r), v(Y[mt] + r))
            for mt in grp:
                for hf in range(2):
                    a.v_pk_fma_f32(v(X[mt] + 2 * hf, 2), v(vCs + mt * 4 + 2 * hf, 2), mreg, v(X[mt] + 2 * hf, 2), m="op_sel_hi:[1,0,1] neg_lo:[0,1,0] neg_hi:[0,1,0]")
                    a.v_pk_fma_f32(v(Y[mt] + 2 * hf, 2), v(vCs + (7 + mt) * 4 + 2 * hf, 2), mreg, v(Y[mt] + 2 * hf, 2), m="op_sel_hi:[1,0,1] neg_lo:[0,1,0] neg_hi:[0,1,0]")
            for mt in grp:
                for hf in range(2):
                    a.v_pk_mul_f32(v(T[mt] + 2 * hf, 2), v(X[mt] + 2 * hf, 2), c1, m="op_sel_hi:[1,0]")
            for mt in grp:
                for r in range(4): a.v_exp_f32(v(T[mt] + r), v(T[mt] + r))
            for mt in grp:
                for hf in range(2):
                    a.v_pk_mul_f32(v(T[mt] + 4 + 2 * hf, 2), v(X[mt] + 2 * hf, 2), v(Y[mt] + 2 * hf, 2))
            for mt in grp:
                for hf in range(2):
                    a.v_pk_add_f32(v(T[mt] + 2 * hf, 2), v(T[mt] + 2 * hf, 2), v(vOne, 2))
            for mt in grp:
                for r in range(4): a.v_rcp_f32(v(T[mt] + r), v(T[mt] + r))
            for mt in grp:
                for hf in range(2):
                    a.v_pk_mul_f32(v(T[mt] + 4 + 2 * hf, 2), v(T[mt] + 4 + 2 * hf, 2), v(T[mt] + 2 * hf, 2))
            for mt in grp:
                for hf in range(2):
                    a.v_cvt_pk_bf16_f32(v(vH + 2 + 2 * mt + hf), v(T[mt] + 4 + 2 * hf), v(T[mt] + 5 + 2 * hf))
        so = s(sT2) if np_ == 0 else s(sT3)
        l1 = a.newlabel("P1_WM1"); l2 = a.newlabel("P1_ST")
        a.s_cmp_eq_u32(s(sWM), 1)
        a.s_cbranch_scc1(l1)
        for i in range(3): a.buffer_store_dwordx4(v(vH + 2 + 4 * i, 4), v(vSO), s(rWS, 4), so, m=f"offen offset:{i * 512} {store_mods}")
        a.buffer_store_dwordx2(v(vH + 14, 2), v(vSO), s(rWS, 4), so, m=f"offen offset:{3 * 512} {store_mods}")
        a.s_branch(l2)
        a.label(l1)
        a.buffer_store_dwordx2(v(vH + 2, 2), v(vSO), s(rWS, 4), so, m=f"offen offset:{3 * 512 + 8} {store_mods}")
        for i in range(3): a.buffer_store_dwordx4(v(vH + 4 + 4 * i, 4), v(vSO), s(rWS, 4), so, m=f"offen offset:{(4 + i) * 512} {store_mods}")
        a.label(l2)
        if np_ == 0: a.s_nop(1)
    S.stamp(4)
    if stamps: a.s_waitcnt("vmcnt(0)")
    S.stamp(5)
    S.flush(6, sB, sW, rWS, vT, sT0)
    a.s_endpgm()
    nv = V.hi
    V.restore(snap)
    a.label("P1_H")
    sH = 36
    a.s_sub_u32(s(sH), s(sW), 4)
    vXo = V.alloc(); vWo = V.alloc(4)
    a.s_and_b32(s(sT0), s(sH), 1)
    a.s_lshl_b32(s(sT0), s(sT0), 2)
    a.v_lshrrev_b32(v(vT), 4, v(vLane))
    a.v_add_u32(v(vT), s(sT0), v(vT))
    a.v_and_b32(v(vT2), 7, v(vLane))
    a.v_xor_b32(v(vT), v(vT), v(vT2))
    a.v_lshlrev_b32(v(vT), 4, v(vT))
    a.v_lshrrev_b32(v(vT2), 3, v(vLane))
    a.v_lshl_add_u32(v(vXo), v(vT2), 10, v(vT))
    a.s_lshl_b32(s(sT0), s(sH), 6)
    a.s_movk_i32(s(sT1), 3584)
    for i in range(4):
        a.v_add_u32(v(vT), s(sT0), v(vLane))
        if i: a.v_add_u32(v(vT), 256 * i, v(vT))
        a.v_mul_u32_u24(v(vT2), 4370, v(vT))
        a.v_lshrrev_b32(v(vT2), 16, v(vT2))
        a.v_mul_u32_u24(v(vT3), 15, v(vT2))
        a.v_sub_u32(v(vT3), v(vT), v(vT3))
        a.v_min_u32(v(vT3), 13, v(vT3))
        a.v_mul_lo_u32(v(vT2), v(vT2), s(sT1))
        a.v_lshl_add_u32(v(vWo + i), v(vT3), 4, v(vT2))
    sXb, sWb, sMx, sQ3 = 38, 39, 40, 42
    a.s_cmp_eq_u32(s(sH), 3)
    a.s_cselect_b64(s(sQ3, 2), 0, -1)
    a.s_lshl_b32(s(sXb), s(sRB), 17)
    a.s_lshl_b32(s(sT0), s(sH), 13)
    a.s_add_u32(s(sXb), s(sXb), s(sT0))
    a.s_mul_i32(s(sWb), s(sCB), 224)
    a.s_lshl_b32(s(sMx), s(sH), 10)
    a.s_waitcnt("lgkmcnt(0)")
    srd(a, rX, sX, 2048 * 512 * 2)
    srd(a, rG, sWG, 512 * 1792 * 2)
    srd(a, rU, sWU, 512 * 1792 * 2)
    srd(a, rWS, sWS, WS_SIZE)
    vm = VM(a)
    def issue_stage(st):
        slot = (st % 3) * SLOT
        if "noload" in variant and st >= 3:
            return vm.n - 1
        for i in range(4):
            a.s_add_u32("m0", s(sMx), slot + XOFF + i * 4096)
            a.s_add_u32(s(sT0), s(sXb), st * 128 + i * 32768)
            a.buffer_load_dwordx4(v(vXo), s(rX, 4), s(sT0), m="offen lds")
            vm.issue()
        a.s_add_u32(s(sT1), s(sWb), st * 64 * 3584)
        for i in range(4):
            if i == 3: a.s_mov_b64("exec", s(sQ3, 2))
            for (r_, off) in ((rG, GOFF), (rU, UOFF)):
                a.s_add_u32("m0", s(sMx), slot + off + i * 4096)
                a.s_nop(0)
                a.buffer_load_dwordx4(v(vWo + i), s(r_, 4), s(sT1), m="offen lds")
                tok = vm.issue()
            if i == 3: a.s_mov_b64("exec", -1)
        return tok
    toks = {}
    for st in range(3): toks[st] = issue_stage(st)
    if standalone:
        vS4 = V.alloc(4, 4); vC = V.alloc(16)
        a.s_lshl_b32(s(sT0), s(sRB), 10)
        a.s_add_u32(s(sT0), s(sT0), WS_STATS)
        a.v_lshlrev_b32(v(vT), 4, v(vLane))
        a.buffer_load_dwordx4(v(vS4, 4), v(vT), s(rWS, 4), s(sT0), m="offen"); vm.issue()
        a.s_mul_i32(s(sT0), s(sCB), 16 * 896)
        a.s_mul_i32(s(sT1), s(sH), 224)
        a.s_add_u32(s(sT0), s(sT0), s(sT1))
        a.s_add_u32(s(sT0), s(sT0), WS_CSP)
        a.v_min_u32(v(vT2), 55, v(vLane))
        a.v_lshlrev_b32(v(vT2), 2, v(vT2))
        for i in range(16):
            a.buffer_load_dword(v(vC + i), v(vT2), s(rWS, 4), s(sT0), m=f"offen offset:{(i % 4) * 896}")
            tokA = vm.issue()
            if i % 4 == 3 and i < 15: a.s_add_u32(s(sT0), s(sT0), 4 * 896)
    S.stamp(1)
    vm.wait(toks[0])
    S.stamp(2)
    a.s_barrier()
    for st in range(8):
        if st >= 1 and st + 2 < 8: toks[st + 2] = issue_stage(st + 2)
        if st == 1 and standalone:
            pass
        if st + 1 < 8: vm.wait(toks[st + 1])
        if st == 2 and standalone:
            for i in range(1, 16): a.v_add_f32(v(vC), v(vC), v(vC + i))
            a.s_mul_i32(s(sT0), s(sH), 224)
            a.s_add_u32(s(sT0), s(sT0), AUX_CS)
            a.v_add_u32(v(vT2), s(sT0), v(vT2))
            a.ds_write_b32(v(vT2), v(vC))
            a.v_lshlrev_b32(v(vT), 4, v(vLane))
            a.v_add_u32(v(vT), AUX_ST, v(vT))
            a.ds_write_b128(v(vT), v(vS4, 4))
            a.s_waitcnt("lgkmcnt(0)")
        S.stamp(3 + st)
        a.s_barrier()
    S.flush(11, sB, sW, rWS, vT, sT0)
    a.label("P1_END")
    a.s_endpgm()
    return a, max(nv, V.hi), 100 if stamps else 48
```

```python
from common import *
from p1 import VM
LOG2E = 1.4426950408889634
NSLOT = 7
RING = NSLOT * 4096
L_RED = 4 * RING
LDS_P2 = L_RED + 49152

def p2_map(a, sB, sTB, sCBK, t0):
    a.s_and_b32(s(t0), s(sB), 7); a.s_lshl_b32(s(t0), s(t0), 2)
    a.s_bfe_u32(s(sTB), s(sB), (2 << 16) | 3); a.s_add_u32(s(sTB), s(sTB), s(t0))
    a.s_lshr_b32(s(sCBK), s(sB), 5)

def final_epilogue(a, V, vAcc, vLane, sW, sTB, sCBK, rWS, rX, rOut, sT0, sT1, sT2, sMASK, l_red, l_priv, hand=""):
    vT, vT2, vT3 = V.alloc(), V.alloc(), V.alloc()
    vTok = V.alloc(); vRG = V.alloc()
    a.v_and_b32(v(vTok), 15, v(vLane)); a.v_lshrrev_b32(v(vRG), 4, v(vLane))
    vR = V.alloc(8, 2); vX = V.alloc(8, 2); vS = V.alloc(8, 4)
    a.s_lshl_b32(s(sT0), s(sTB), 9); a.s_add_u32(s(sT0), s(sT0), WS_STATS)
    a.v_lshlrev_b32(v(vT), 3, v(vTok))
    for tt in range(4): a.buffer_load_dwordx2(v(vR + 2 * tt, 2), v(vT), s(rWS, 4), s(sT0), m=f"offen offset:{128 * tt} {hand}")
    vXo = V.alloc()
    a.v_lshlrev_b32(v(vXo), 10, v(vTok)); a.v_lshl_add_u32(v(vXo), v(vRG), 3, v(vXo))
    a.s_lshl_b32(s(sT1), s(sTB), 16); a.s_lshl_b32(s(sT2), s(sCBK), 7); a.s_add_u32(s(sT1), s(sT1), s(sT2))
    a.s_lshl_b32(s(sT2), s(sW), 5); a.s_add_u32(s(sT1), s(sT1), s(sT2))
    sXB = sT1
    for tt in range(4):
        a.s_add_u32(s(sT0), s(sXB), tt * 16384)
        a.buffer_load_dwordx2(v(vX + 2 * tt, 2), v(vXo), s(rX, 4), s(sT0), m="offen")
    return dict(vT=vT, vT2=vT2, vT3=vT3, vTok=vTok, vRG=vRG, vR=vR, vX=vX, vS=vS, vXo=vXo, sXB=sXB)

def gen_p2(name="p2_kernel", stamps=False):
    a = Asm()
    S = Stamps(a, stamps, 3)
    S.stamp(0)
    sB = 2
    sX, sWS, sWD, sOut = 4, 6, 8, 10
    rX, rWD, rWS, rOut = 12, 16, 20, 24
    sW, sTB, sCBK, sT0, sT1, sT2, sT3, sMASK, sL, sHB, sWB = 28, 29, 30, 31, 32, 33, 34, 35, 36, 37, 38
    a.s_cmp_ge_u32(s(sB), 256); a.s_cbranch_scc1("P2_END")
    a.s_load_dwordx2(s(sX, 2), s(0, 2), KA["x"]); a.s_load_dwordx2(s(sWS, 2), s(0, 2), KA["ws"])
    a.s_load_dwordx4(s(sWD, 4), s(0, 2), KA["wd"])
    V = Alloc(256, 1)
    vLane = V.alloc(); vT = V.alloc(); vT2 = V.alloc(); vT3 = V.alloc()
    a.v_and_b32(v(vLane), 63, v(0)); a.v_lshrrev_b32(v(vT), 6, v(0)); a.s_nop(0)
    a.v_readfirstlane_b32(s(sW), v(vT))
    p2_map(a, sB, sTB, sCBK, sT0)
    a.s_mov_b32(s(sMASK), "0xffff0000")
    a.s_mul_i32(s(sL), s(sW), RING)
    vAcc = V.alloc(64, 4); vH = V.alloc(64, 4); vWf = V.alloc(32, 4)
    vDo = V.alloc(); vHo = V.alloc(); vTr = V.alloc(4)
    a.v_lshrrev_b32(v(vT), 4, v(vLane)); a.v_lshlrev_b32(v(vT), 1, v(vT)); a.v_and_b32(v(vT), 6, v(vT))
    a.v_and_b32(v(vT2), 7, v(vLane)); a.v_xor_b32(v(vT), v(vT), v(vT2)); a.v_lshlrev_b32(v(vT), 4, v(vT))
    a.v_lshrrev_b32(v(vT2), 3, v(vLane)); a.v_lshl_add_u32(v(vDo), v(vT2), 10, v(vT))
    a.v_lshlrev_b32(v(vHo), 4, v(vLane))
    a.v_bfe_u32(v(vT), v(vLane), 5, 1); a.v_lshlrev_b32(v(vT), 4, v(vT))
    a.v_bfe_u32(v(vT2), v(vLane), 4, 1); a.v_lshl_add_u32(v(vT), v(vT2), 2, v(vT))
    a.v_bfe_u32(v(vT3), v(vLane), 2, 2); a.v_add_u32(v(vT), v(vT), v(vT3))
    a.v_lshlrev_b32(v(vT), 7, v(vT))
    a.v_lshrrev_b32(v(vT3), 1, v(vT3)); a.v_lshl_add_u32(v(vT2), v(vT2), 1, v(vT3))
    a.v_and_b32(v(vT3), 3, v(vLane)); a.v_lshl_add_u32(v(vT), v(vT3), 3, v(vT))
    a.v_add_u32(v(vT), s(sL), v(vT))
    for ct in range(4):
        a.v_xor_b32(v(vT3), ct, v(vT2)); a.v_lshl_add_u32(v(vTr + ct), v(vT3), 5, v(vT))
    for i in range(64): a.v_mov_b32(v(vAcc + i), 0)
    a.s_mul_i32(s(sT0), s(sW), 14 * 32 * 1024); a.s_lshl_b32(s(sT1), s(sCBK), 7); a.s_add_u32(s(sWB), s(sT0), s(sT1))
    a.s_lshl_b32(s(sT0), s(sTB), 2); a.s_mul_i32(s(sT0), s(sT0), 57344)
    a.s_mul_i32(s(sT1), s(sW), 14 * 1024); a.s_add_u32(s(sT0), s(sT0), s(sT1)); a.s_add_u32(s(sHB), s(sT0), WS_HF)
    a.s_waitcnt("lgkmcnt(0)")
    srd(a, rX, sX, 2048 * 1024); srd(a, rWD, sWD, 1792 * 1024); srd(a, rWS, sWS, WS_SIZE); srd(a, rOut, sOut, 2048 * 1024)
    vm = VM(a)
    wtok = {}; htok = {}
    def issue_w(p):
        for q in range(4):
            a.s_add_u32("m0", s(sL), (p % NSLOT) * 4096 + q * 1024)
            a.s_add_u32(s(sT0), s(sWB), (32 * p + 8 * q) * 1024)
            a.buffer_load_dwordx4(v(vDo), s(rWD, 4), s(sT0), m="offen lds")
            wtok[p] = vm.issue()
    def issue_h(p):
        for tt in range(4):
            a.s_add_u32(s(sT0), s(sHB), tt * 57344 + p * 1024)
            a.buffer_load_dwordx4(v(vH + 16 * (p % 4) + 4 * tt, 4), v(vHo), s(rWS, 4), s(sT0), m="offen")
            htok[p] = vm.issue()
    def read_w(p):
        for ct in range(4):
            for hf in range(2):
                a.ds_read_b64_tr_b16(v(vWf + 16 * (p % 2) + 4 * ct + 2 * hf, 2), v(vTr + ct), m=f"offset:{(p % NSLOT) * 4096 + hf * 1024}")
    for p in range(4): issue_w(p); issue_h(p)
    for p in range(4, NSLOT): issue_w(p)
    S.stamp(1)
    vm.wait(wtok[0]); read_w(0)
    for p in range(14):
        if p + 1 < 14:
            vm.wait(wtok[p + 1])
        vm.wait(htok[p]) if vm.n - 1 - htok[p] < (vm.n - 1 - wtok[p + 1] if p + 1 < 14 else 99) else None
        a.s_waitcnt("lgkmcnt(0)")
        if p + 1 < 14: read_w(p + 1)
        k = 0
        for ct in range(4):
            for tt in range(4):
                acc = v(vAcc + (ct * 4 + tt) * 4, 4)
                a.v_mfma_f32_16x16x32_bf16(acc, v(vWf + 16 * (p % 2) + 4 * ct, 4), v(vH + 16 * (p % 4) + 4 * tt, 4), acc)
        if p + NSLOT < 14: issue_w(p + NSLOT)
        if p + 4 < 14: issue_h(p + 4)
    S.stamp(2)
    E = final_epilogue(a, V, vAcc, vLane, sW, sTB, sCBK, rWS, rX, rOut, sT1, sT2, sT3, sMASK, L_RED, sL)
    vT, vT2, vT3, vTok, vRG, vR, vX, vS, vXo, sXB = [E[k] for k in ("vT", "vT2", "vT3", "vTok", "vRG", "vR", "vX", "vS", "vXo", "sXB")]
    a.v_lshrrev_b32(v(vT), 2, v(vLane)); a.v_lshlrev_b32(v(vT), 12, v(vT))
    a.v_and_b32(v(vT2), 3, v(vLane)); a.v_lshl_add_u32(v(vT), v(vT2), 5, v(vT))
    a.s_lshl_b32(s(sT0), s(sCBK), 6); a.s_lshl_b32(s(sT1), s(sW), 4); a.s_add_u32(s(sT0), s(sT0), s(sT1))
    a.s_lshl_b32(s(sT0), s(sT0), 12); a.s_lshl_b32(s(sT1), s(sTB), 7); a.s_add_u32(s(sT0), s(sT0), s(sT1))
    a.s_add_u32(s(sT0), s(sT0), WS_ST)
    a.buffer_load_dwordx4(v(vS, 4), v(vT), s(rWS, 4), s(sT0), m="offen")
    a.buffer_load_dwordx4(v(vS + 4, 4), v(vT), s(rWS, 4), s(sT0), m="offen offset:16")
    a.v_lshlrev_b32(v(vT3), 4, v(vLane))
    for d in range(1, 4):
        lab = {}
        a.s_add_u32(s(sT0), s(sW), d); a.s_and_b32(s(sT0), s(sT0), 3)
        a.s_mul_i32(s(sT1), s(sT0), 12288); a.s_add_u32(s(sT1), s(sT1), L_RED + (d - 1) * 4096)
        a.v_add_u32(v(vT2), s(sT1), v(vT3))
        lend = a.newlabel("P2_W")
        for ct in range(4):
            ln = a.newlabel("P2_WN")
            a.s_cmp_eq_u32(s(sT0), ct); a.s_cbranch_scc0(ln)
            for tt in range(4): a.ds_write_b128(v(vT2), v(vAcc + (ct * 4 + tt) * 4, 4), m=f"offset:{tt * 1024}")
            a.s_branch(lend)
            a.label(ln)
        a.label(lend)
    vF = V.alloc(16, 4)
    lend = a.newlabel("P2_M")
    for ct in range(4):
        ln = a.newlabel("P2_MN")
        a.s_cmp_eq_u32(s(sW), ct); a.s_cbranch_scc0(ln)
        for i in range(16): a.v_mov_b32(v(vF + i), v(vAcc + ct * 16 + i))
        a.s_branch(lend)
        a.label(ln)
    a.label(lend)
    a.s_waitcnt("vmcnt(0)")
    a.v_lshrrev_b32(v(vT), 2, v(vLane)); a.v_lshlrev_b32(v(vT), 7, v(vT))
    a.v_and_b32(v(vT2), 3, v(vLane)); a.v_lshl_add_u32(v(vT), v(vT2), 5, v(vT)); a.v_add_u32(v(vT), s(sL), v(vT))
    a.ds_write_b128(v(vT), v(vS, 4)); a.ds_write_b128(v(vT), v(vS + 4, 4), m="offset:16")
    a.s_waitcnt("lgkmcnt(0)")
    a.s_barrier()
    S.stamp(3)
    a.s_mul_i32(s(sT1), s(sW), 12288); a.s_add_u32(s(sT1), s(sT1), L_RED)
    a.v_add_u32(v(vT2), s(sT1), v(vT3))
    vP = vH
    for d in range(3):
        for tt in range(4): a.ds_read_b128(v(vP + 16 * d + 4 * tt, 4), v(vT2), m=f"offset:{d * 4096 + tt * 1024}")
    a.v_lshlrev_b32(v(vT), 2, v(vRG)); a.v_bfe_u32(v(vT3), v(vLane), 2, 2); a.v_add_u32(v(vT), v(vT), v(vT3))
    a.v_lshlrev_b32(v(vT), 7, v(vT)); a.v_and_b32(v(vT3), 3, v(vLane)); a.v_lshl_add_u32(v(vT), v(vT3), 3, v(vT))
    a.v_add_u32(v(vT), s(sL), v(vT))
    for tt in range(4): a.ds_read_b64_tr_b16(v(vS + 2 * tt, 2), v(vT), m=f"offset:{tt * 32}")
    a.s_waitcnt("lgkmcnt(0)")
    for d in range(3):
        for i in range(16): a.v_add_f32(v(vF + i), v(vF + i), v(vP + 16 * d + i))
    tm = vWf
    for tt in range(4):
        f = vF + 4 * tt; r_ = vR + 2 * tt + 1
        a.v_mul_f32(v(tm), v(r_), v(r_))
        for q in range(4): a.v_mul_f32(v(f + q), v(f + q), v(tm))
        a.v_cvt_pk_bf16_f32(v(tm), v(f), v(f + 1)); a.v_cvt_pk_bf16_f32(v(tm + 1), v(f + 2), v(f + 3))
        for q in range(2):
            a.v_lshlrev_b32(v(f + 2 * q), 16, v(tm + q)); a.v_and_b32(v(f + 2 * q + 1), s(sMASK), v(tm + q))
        for q in range(4): a.v_mul_f32(v(tm + 2 + q), f32hex(-LOG2E), v(f + q))
        for q in range(4): a.v_exp_f32(v(tm + 2 + q), v(tm + 2 + q))
        for q in range(4): a.v_add_f32(v(tm + 2 + q), 1.0, v(tm + 2 + q))
        for q in range(4): a.v_rcp_f32(v(tm + 2 + q), v(tm + 2 + q))
        for q in range(4): a.v_mul_f32(v(f + q), v(f + q), v(tm + 2 + q))
        a.v_cvt_pk_bf16_f32(v(tm), v(f), v(f + 1)); a.v_cvt_pk_bf16_f32(v(tm + 1), v(f + 2), v(f + 3))
        for q in range(2):
            a.v_lshlrev_b32(v(f + 2 * q), 16, v(tm + q)); a.v_and_b32(v(f + 2 * q + 1), s(sMASK), v(tm + q))
            a.v_lshlrev_b32(v(tm + 2 + 2 * q), 16, v(vS + 2 * tt + q)); a.v_and_b32(v(tm + 3 + 2 * q), s(sMASK), v(vS + 2 * tt + q))
        for q in range(4): a.v_mul_f32(v(f + q), v(f + q), v(tm + 2 + q))
        a.v_cvt_pk_bf16_f32(v(tm), v(f), v(f + 1)); a.v_cvt_pk_bf16_f32(v(tm + 1), v(f + 2), v(f + 3))
        for q in range(2):
            a.v_lshlrev_b32(v(f + 2 * q), 16, v(tm + q)); a.v_and_b32(v(f + 2 * q + 1), s(sMASK), v(tm + q))
            a.v_lshlrev_b32(v(tm + 2 + 2 * q), 16, v(vX + 2 * tt + q)); a.v_and_b32(v(tm + 3 + 2 * q), s(sMASK), v(vX + 2 * tt + q))
        for q in range(4): a.v_add_f32(v(f + q), v(f + q), v(tm + 2 + q))
        a.v_cvt_pk_bf16_f32(v(vP + 2 * tt), v(f), v(f + 1)); a.v_cvt_pk_bf16_f32(v(vP + 2 * tt + 1), v(f + 2), v(f + 3))
        a.s_add_u32(s(sT0), s(sXB), tt * 16384)
        a.buffer_store_dwordx2(v(vP + 2 * tt, 2), v(vXo), s(rOut, 4), s(sT0), m="offen")
    S.stamp(4)
    S.flush(5, sB, sW, rWS, vT, sT0)
    a.label("P2_END")
    a.s_endpgm()
    return a, V.hi, 100 if stamps else 48
```

```python
import sys
sys.path.insert(0, "gen")
from build import *
import cv, p2
st = "nostamp" not in sys.argv
a, nv, ns = cv.gen_cv()
out = sys.argv[1]
build([("p0_kernel", p0.gen_p0, 256, 256, 256),
       ("p1_kernel", lambda n: p1.gen_p1(n, stamps=st), 256, 512, p1.LDS_P1),
       ("cv_kernel", lambda n: cv.gen_cv(n, stamps=st), 256, 256, cv.gen_cv.lds),
       ("p2_kernel", lambda n: p2.gen_p2(n, stamps=st), 256, 256, p2.LDS_P2)], out)
```

```python
from asmlib import *

KA = dict(x=0, A_re=8, A_im=16, B_re=24, B_im=32, C_re=40, C_im=48, log_dt=56, Dskip=64, B_x=72,
          wg=80, wu=88, wd=96, out=104, dbg=112, ws=120)
WS_XNT = 0x001000
WS_STATS = 0x210000
WS_CSP = 0x220000
WS_HF = 0x300000
HF_TT = 57344 + 128
WS_ST = 0xB00000
WS_FLAGS = 0xD10000
WS_SIZE = 0xE00000
WS_PROBE = [0x0, 0x208000, WS_HF + 20 * HF_TT + 57344, WS_HF + 56 * HF_TT + 57344, WS_HF + 92 * HF_TT + 57344, 0xAF0000, 0xD08000]

SRD3 = 0x00020000

def srd(a, sreg, ptr_lo, nbytes):
    a.s_mov_b32(s(sreg), s(ptr_lo))
    a.s_and_b32(s(sreg + 1), s(ptr_lo + 1), 0xffff)
    a.s_mov_b32(s(sreg + 2), hex(nbytes))
    a.s_mov_b32(s(sreg + 3), hex(SRD3))

def bf16_round(a, dst, src):
    a.v_cvt_pk_bf16_f32(v(dst), v(src), v(src))
    a.v_lshlrev_b32(v(dst), 16, v(dst))

def wave_sum_dpp(a, regs):
    for ctl in ["row_shr:1", "row_shr:2", "row_shr:4", "row_shr:8"]:
        for r in regs: a.v_add_f32_dpp(v(r), v(r), v(r), m=f"{ctl} row_mask:0xf bank_mask:0xf")
    for r in regs: a.v_add_f32_dpp(v(r), v(r), v(r), m="row_bcast:15 row_mask:0xa bank_mask:0xf")
    for r in regs: a.v_add_f32_dpp(v(r), v(r), v(r), m="row_bcast:31 row_mask:0xc bank_mask:0xf")

def f32hex(x):
    import struct
    return hex(struct.unpack("<I", struct.pack("<f", x))[0])

WS_DBG = 0xD80000
STAMP_S0 = 64
class Stamps:
    def __init__(self, a, enabled, kidx):
        self.a = a; self.en = enabled; self.kidx = kidx
    def stamp(self, i):
        if not self.en: return
        if getattr(self, "cyc", False): self.a.s_memtime(s(STAMP_S0 + 2 * i, 2))
        else: self.a.s_memrealtime(s(STAMP_S0 + 2 * i, 2))
    def flush(self, n, sB, sWave, rWS, vtmp, stmp):
        if not self.en: return
        a = self.a
        a.s_waitcnt("lgkmcnt(0)")
        a.s_lshl_b32(s(stmp), s(sB), 3)
        a.s_add_u32(s(stmp), s(stmp), s(sWave))
        a.s_lshl_b32(s(stmp), s(stmp), 6)
        a.s_add_u32(s(stmp), s(stmp), WS_DBG + self.kidx * 256 * 8 * 64)
        a.v_mov_b32(v(vtmp), 0)
        a.s_mov_b64("exec", 1)
        for i in range(n):
            a.v_mov_b32(v(vtmp + 1), s(STAMP_S0 + 2 * i))
            a.buffer_store_dword(v(vtmp + 1), v(vtmp), s(rWS, 4), s(stmp), m=f"offen offset:{4 * i}")
        a.s_mov_b64("exec", -1)
```

```python
from common import *
from cv import cmul, direct, rne_pow2
import math
LOG2E = 1.4426950408889634
PITCH = 288
TAB_W = 32 * PITCH
KR_COPY = 4160
KR_CH = 2 * KR_COPY
U_CH = 4608
CV_LDS = 4 * TAB_W + 2 * KR_CH + 2 * U_CH

class GroupSync:
    def __init__(self, a, vAddr, vTmp, sTmp):
        self.a = a; self.vAddr = vAddr; self.vTmp = vTmp; self.sTmp = sTmp
    def arrive(self, off):
        a = self.a
        a.v_mov_b32(v(self.vTmp), 1)
        a.s_mov_b64("exec", 1)
        a.ds_add_u32(v(self.vAddr), v(self.vTmp), m=f"offset:{off}")
        a.s_mov_b64("exec", -1)
    def wait(self, off, target):
        a = self.a
        l = a.newlabel("GS")
        a.label(l)
        a.ds_read_b32(v(self.vTmp), v(self.vAddr), m=f"offset:{off}")
        a.s_waitcnt("lgkmcnt(0)")
        a.v_readfirstlane_b32(s(self.sTmp), v(self.vTmp))
        a.s_cmp_lt_u32(s(self.sTmp), target)
        a.s_cbranch_scc1(l)

def cv_param_loads(a, V, P, sD, sT0, vLane, sNH):
    vP = V.alloc(6, 2); vLd = V.alloc(2); vT = V.alloc()
    a.s_lshl_b32(s(sT0), s(sD), 8)
    a.v_lshlrev_b32(v(vT), 1, v(vLane))
    a.v_add_u32(v(vT), s(sT0), v(vT))
    a.s_lshl_b32(s(sT0), s(sNH), 7)
    a.v_add_u32(v(vT), s(sT0), v(vT))
    for i, nm in enumerate(["A_re", "A_im", "B_re", "B_im", "C_re", "C_im"]):
        a.global_load_ushort(v(vP + i), v(vT), s(P[nm], 2))
    a.s_lshl_b32(s(sT0), s(sD), 1)
    a.v_mov_b32(v(vT), s(sT0))
    a.global_load_ushort(v(vLd), v(vT), s(P["log_dt"], 2))
    a.global_load_ushort(v(vLd + 1), v(vT), s(P["Dskip"], 2))
    V.free(vT)
    return vP, vLd

def kgen(a, V, S, vP, vLd, vLane, sTab, sT0):
    vT, vT2, vT3 = V.alloc(), V.alloc(), V.alloc()
    vDt = V.alloc(); vDsk = V.alloc()
    a.v_lshlrev_b32(v(vDt), 16, v(vLd))
    a.v_mul_f32(v(vDt), f32hex(LOG2E), v(vDt))
    a.v_exp_f32(v(vDt), v(vDt))
    a.v_lshlrev_b32(v(vDsk), 16, v(vLd + 1))
    for i in range(6): a.v_lshlrev_b32(v(vP + i), 16, v(vP + i))
    bf16_round(a, vDt, vDt)
    vI = V.alloc(); vKG = V.alloc()
    a.v_and_b32(v(vI), 15, v(vLane))
    a.v_lshrrev_b32(v(vKG), 4, v(vLane)); a.v_lshlrev_b32(v(vKG), 4, v(vKG))
    a.v_add_u32(v(vKG), s(sTab), v(vKG))
    vAl, vBe = V.alloc(), V.alloc()
    vCB = V.alloc(2, 2); vTm = V.alloc(4, 2); vPk = V.alloc(2)
    a.v_mul_f32(v(vAl), v(vDt), v(vP)); a.v_mul_f32(v(vBe), v(vDt), v(vP + 1))
    a.v_mul_f32(v(vAl), f32hex(LOG2E), v(vAl)); a.v_mul_f32(v(vBe), f32hex(1.0 / (2 * math.pi)), v(vBe))
    a.v_mul_f32(v(vTm), v(vDt), v(vP + 2)); a.v_mul_f32(v(vTm + 1), v(vDt), v(vP + 3))
    cmul(a, vCB, vP + 4, vTm)
    a.s_mov_b32("m0", s(sTab))
    st = {"k": 0}
    def put(row, src):
        k = st["k"]; st["k"] ^= 1
        a.v_cvt_pk_bf16_f32(v(vPk + k), v(src), v(src + 1))
        a.ds_write_addtid_b32(v(vPk + k), m=f"offset:{row * PITCH}")
    vY = V.alloc(64, 2)
    Y = lambda r: vY + 2 * r
    a.v_mov_b32(v(vPk), "0x3f80"); a.ds_write_addtid_b32(v(vPk), m="offset:0"); st["k"] = 1
    direct(a, Y(1), vAl, vBe, 16, vTm, conj=True); put(1, Y(1))
    for r in range(2, 16):
        if r % 2 == 0: cmul(a, Y(r), Y(r // 2), Y(r // 2))
        else: cmul(a, Y(r), Y(r - 1), Y(1))
        put(r, Y(r))
    for r in range(16, 32):
        cmul(a, Y(r), Y(r - 8), Y(r - 8)); put(r, Y(r))
    vBa = V.alloc(3)
    a.v_mul_u32_u24(v(vBa), PITCH, v(vI)); a.v_add_u32(v(vBa), v(vBa), v(vKG))
    a.v_lshlrev_b32(v(vT), 1, v(vI)); a.v_add_u32(v(vT2), 8, v(vI)); a.v_min_u32(v(vT), v(vT), v(vT2))
    a.v_mul_u32_u24(v(vBa + 1), PITCH, v(vT)); a.v_add_u32(v(vBa + 1), v(vBa + 1), v(vKG))
    a.v_lshlrev_b32(v(vT), 2, v(vI)); a.v_lshlrev_b32(v(vT2), 1, v(vI)); a.v_add_u32(v(vT2), 8, v(vT2)); a.v_min_u32(v(vT), v(vT), v(vT2))
    a.v_add_u32(v(vT2), 16, v(vI)); a.v_min_u32(v(vT), v(vT), v(vT2))
    a.v_mul_u32_u24(v(vBa + 2), PITCH, v(vT)); a.v_add_u32(v(vBa + 2), v(vBa + 2), v(vKG))
    vZ = V.alloc(8, 2)
    direct(a, vZ, vAl, vBe, 1, vTm)
    cmul(a, vZ + 2, vZ, vZ); cmul(a, vZ + 4, vZ + 2, vZ + 2); cmul(a, vZ + 6, vZ + 4, vZ + 4)
    vX = V.alloc(8, 2)
    def cmul_conj(d, x, y):
        a.v_pk_mul_f32(v(d, 2), v(x, 2), v(y, 2), m="op_sel_hi:[1,0]")
        a.v_pk_fma_f32(v(d, 2), v(x, 2), v(y, 2), v(d, 2), m="op_sel:[1,1,0] op_sel_hi:[0,1,1] neg_hi:[1,0,0]")
    cmul_conj(vX + 2, vCB, Y(16)); cmul_conj(vX + 4, vCB, Y(24)); cmul_conj(vX + 6, vX + 4, Y(24))
    a.s_waitcnt("lgkmcnt(0)")
    vBf = V.alloc(48, 4)
    for k in range(3):
        for p in range(4): a.ds_read_b128(v(vBf + 16 * k + 4 * p, 4), v(vBa + k), m=f"offset:{64 * p}")
    V.free(vY, 64); V.free(vBa, 3)
    a.s_waitcnt("lgkmcnt(0)")
    vC = V.alloc(4, 2)
    def chain(start, step, n, row0):
        cur, nxt = start, vC
        for i in range(n):
            put(row0 + i, cur)
            if i < n - 1:
                cmul(a, nxt, cur, step)
                cur, nxt = nxt, (vC + 2 if nxt == vC else vC)
    chain(vCB, vZ, 16, 0)
    chain(vX + 2, vZ + 2, 9, 16)
    vAa = V.alloc(8)
    a.v_mul_u32_u24(v(vAa), PITCH, v(vI)); a.v_add_u32(v(vAa), v(vAa), v(vKG))
    rne_pow2(a, vT, vI, 1, vT2); a.v_lshrrev_b32(v(vT), 1, v(vT)); a.v_add_u32(v(vT), 16, v(vT))
    a.v_mul_u32_u24(v(vAa + 1), PITCH, v(vT)); a.v_add_u32(v(vAa + 1), v(vAa + 1), v(vKG))
    for sub in range(2):
        a.v_add_u32(v(vT3), 16 * sub, v(vI)); rne_pow2(a, vT, vT3, 2, vT2); a.v_lshrrev_b32(v(vT), 2, v(vT))
        a.v_mul_u32_u24(v(vAa + 2 + sub), PITCH, v(vT)); a.v_add_u32(v(vAa + 2 + sub), v(vAa + 2 + sub), v(vKG))
    for sub in range(4):
        a.v_add_u32(v(vT3), 16 * sub, v(vI)); rne_pow2(a, vT, vT3, 3, vT2); a.v_lshrrev_b32(v(vT), 3, v(vT)); a.v_add_u32(v(vT), 9, v(vT))
        a.v_mul_u32_u24(v(vAa + 4 + sub), PITCH, v(vT)); a.v_add_u32(v(vAa + 4 + sub), v(vAa + 4 + sub), v(vKG))
    vAf = V.alloc(64, 4); vAcc = V.alloc(32, 4)
    a.s_waitcnt("lgkmcnt(0)")
    for t in range(2):
        for p in range(4): a.ds_read_b128(v(vAf + 16 * t + 4 * p, 4), v(vAa + t), m=f"offset:{64 * p}")
    a.s_waitcnt("lgkmcnt(0)")
    chain(vX + 4, vZ + 4, 9, 0)
    def mf(t, af, bk):
        for p in range(4):
            acc = v(vAcc + 4 * t, 4)
            a.v_mfma_f32_16x16x32_bf16(acc, v(vBf + 16 * bk + 4 * p, 4), v(af + 4 * p, 4), 0 if p == 0 else acc)
    mf(0, vAf, 0); mf(1, vAf + 16, 0)
    chain(vX + 6, vZ + 6, 9, 9)
    a.s_waitcnt("lgkmcnt(0)")
    for t in range(2, 6):
        for p in range(4): a.ds_read_b128(v(vAf + 16 * (t - 2) + 4 * p, 4), v(vAa + t), m=f"offset:{64 * p}")
    for k, t in enumerate(range(2, 6)):
        a.s_waitcnt(f"lgkmcnt({12 - 4 * k})")
        mf(t, vAf + 16 * (t - 2), 1 if t < 4 else 2)
        if t < 4:
            for p in range(4): a.ds_read_b128(v(vAf + 16 * (t - 2) + 4 * p, 4), v(vAa + t + 4), m=f"offset:{64 * p}") if False else None
    for t in range(6, 8):
        for p in range(4): a.ds_read_b128(v(vAf + 16 * (t - 6) + 4 * p, 4), v(vAa + t), m=f"offset:{64 * p}")
    for k, t in enumerate(range(6, 8)):
        a.s_waitcnt(f"lgkmcnt({4 - 4 * k})")
        mf(t, vAf + 16 * (t - 6), 2)
    for r_, n_ in ((vT, 1), (vT2, 1), (vT3, 1), (vDt, 1), (vKG, 1), (vAl, 1), (vBe, 1), (vCB, 2), (vTm, 4), (vPk, 2), (vZ, 8), (vX, 8), (vC, 4), (vAa, 8), (vAf, 64), (vBf, 48), (vI, 1)): V.free(r_, n_)
    V.free(vP, 6); V.free(vLd, 2)
    return vAcc, vDsk

KT = [(0, 16, 0), (256, 16, 0), (512, 32, 0), (512, 32, 1), (1024, 64, 0), (1024, 64, 1), (1024, 64, 2), (1024, 64, 3)]

def pair_exchange(a, V, vAcc, vLane, sTab, sTabP, sNH, G, off_cnt, target, nkeep=4):
    vT = V.alloc()
    a.v_lshlrev_b32(v(vT), 4, v(vLane)); a.v_add_u32(v(vT), s(sTab), v(vT))
    l1 = a.newlabel("PX1"); l2 = a.newlabel("PX2")
    a.s_cmp_eq_u32(s(sNH), 1); a.s_cbranch_scc1(l1)
    a.s_nop(7)
    for t in range(4): a.ds_write_b128(v(vT), v(vAcc + 16 + 4 * t, 4), m=f"offset:{1024 * t}")
    a.s_branch(l2)
    a.label(l1)
    a.s_nop(7)
    for t in range(4): a.ds_write_b128(v(vT), v(vAcc + 4 * t, 4), m=f"offset:{1024 * t}")
    for i in range(16): a.v_mov_b32(v(vAcc + i), v(vAcc + 16 + i))
    a.label(l2)
    a.s_waitcnt("lgkmcnt(0)")
    G.arrive(off_cnt)
    G.wait(off_cnt, target)
    a.v_lshlrev_b32(v(vT), 4, v(vLane)); a.v_add_u32(v(vT), s(sTabP), v(vT))
    for t in range(4): a.ds_read_b128(v(vAcc + 16 + 4 * t, 4), v(vT), m=f"offset:{1024 * t}")
    a.s_waitcnt("lgkmcnt(0)")
    for i in range(16): a.v_add_f32(v(vAcc + i), v(vAcc + i), v(vAcc + 16 + i))
    V.free(vT)

def k_write(a, V, vAcc, vLane, sKR, sNH):
    vT, vT3, vI = V.alloc(), V.alloc(), V.alloc(); vTm = V.alloc(4, 2)
    a.v_and_b32(v(vI), 15, v(vLane))
    a.v_lshrrev_b32(v(vT3), 4, v(vLane))
    l1 = a.newlabel("KW1"); l2 = a.newlabel("KW2")
    a.s_cmp_eq_u32(s(sNH), 1); a.s_cbranch_scc1(l1)
    for nh in range(2):
        if nh == 1: a.label(l1)
        for t in range(4):
            base, step, sub = KT[4 * nh + t]
            if t == 0 or KT[4 * nh + t - 1][1] != step:
                a.v_mul_u32_u24(v(vT), 4 * step, v(vT3)); a.v_add_u32(v(vT), v(vT), v(vI))
                a.v_lshlrev_b32(v(vT), 1, v(vT)); a.v_sub_u32(v(vT), s(sKR), v(vT))
            c = base + 16 * sub
            acc = vAcc + 4 * t
            tm = vTm + 2 * (t % 2)
            a.v_cvt_pk_bf16_f32(v(tm), v(acc), v(acc + 1))
            a.v_cvt_pk_bf16_f32(v(tm + 1), v(acc + 2), v(acc + 3))
            for r in range(4):
                op = a.ds_write_b16 if r % 2 == 0 else a.ds_write_b16_d16_hi
                op(v(vT), v(tm + r // 2), m=f"offset:{2 * (2048 - c - step * r)}")
                op(v(vT), v(tm + r // 2), m=f"offset:{KR_COPY + 2 * (2047 - c - step * r)}")
        if nh == 0: a.s_branch(l2)
    a.label(l2)
    V.free(vT); V.free(vT3); V.free(vI); V.free(vTm, 4)

def conv(a, V, S, vLane, sKR, sU, sNH, sT0, sT1, sT2, lab):
    vT, vT2, vT3, vI = V.alloc(), V.alloc(), V.alloc(), V.alloc()
    vY = V.alloc(32, 4); vA = [V.alloc(32, 4), V.alloc(32, 4)]; vB = [V.alloc(32, 4), V.alloc(32, 4)]
    vAa = V.alloc(4); vBa = V.alloc()
    a.v_and_b32(v(vI), 15, v(vLane))
    a.v_and_b32(v(vT), 1, v(vI)); a.v_add_u32(v(vT2), v(vI), v(vT))
    a.v_lshrrev_b32(v(vT3), 4, v(vLane)); a.v_lshlrev_b32(v(vT3), 3, v(vT3))
    a.v_add_u32(v(vT2), v(vT2), v(vT3)); a.v_sub_u32(v(vT2), 2056, v(vT2)); a.v_lshlrev_b32(v(vT2), 1, v(vT2))
    a.v_mul_u32_u24(v(vT), KR_COPY, v(vT)); a.v_add_u32(v(vT2), v(vT2), v(vT))
    a.s_lshl_b32(s(sT0), s(sNH), 8)
    a.s_sub_u32(s(sT1), s(sKR), s(sT0))
    a.v_add_u32(v(vT2), s(sT1), v(vT2))
    for k in range(4): a.v_subrev_u32(v(vAa + k), 512 * (2 * k + 1) + 192, v(vT2))
    a.v_lshlrev_b32(v(vT), 5, v(vI)); a.v_lshlrev_b32(v(vT3), 1, v(vT3))
    a.v_sub_u32(v(vT), v(vT), v(vT3))
    a.s_sub_u32(s(sT1), s(sU), s(sT0)); a.s_add_u32(s(sT1), s(sT1), 528 - 192)
    a.v_add_u32(v(vBa), s(sT1), v(vT))
    def rds(s0, buf):
        out = []
        for s1 in range(8):
            k = s1 // 2; o = (128 if s1 % 2 == 0 else 0) + 16 * (3 - s0)
            out.append(f"    ds_read2_b32 {v(vA[buf] + 4 * s1, 2)}, {v(vAa + k)} offset0:{o} offset1:{o + 1}")
            out.append(f"    ds_read2_b32 {v(vA[buf] + 4 * s1 + 2, 2)}, {v(vAa + k)} offset0:{o + 2} offset1:{o + 3}")
            out.append(f"    ds_read_b128 {v(vB[buf] + 4 * s1, 4)}, {v(vBa)} offset:{512 * s1 + 64 * (3 - s0)}")
        return out
    for r in rds(0, 0): a.emit(r)
    for s0 in range(4):
        buf = s0 % 2
        nxt = rds(s0 + 1, 1 - buf) if s0 < 3 else []
        a.s_waitcnt("lgkmcnt(0)")
        k = 0
        for tot in range(8):
            for s1 in range(tot + 1):
                acc = v(vY + 4 * tot, 4)
                first = (s0 == 0 and s1 == 0)
                a.v_mfma_f32_16x16x32_bf16(acc, v(vA[buf] + 4 * s1, 4), v(vB[buf] + 4 * (tot - s1), 4), 0 if first else acc)
                if k < len(nxt): a.emit(nxt[k])
                k += 1
    for r_, n_ in ((vT, 1), (vT2, 1), (vT3, 1), (vI, 1), (vA[0], 32), (vA[1], 32), (vB[0], 32), (vB[1], 32), (vAa, 4), (vBa, 1)): V.free(r_, n_)
    return vY

def s_finish(a, V, vY, vDsk, vLane, sU, sNH, sD, sMASK, rWS, sT0, sT1, mods):
    vT2, vT3, vI = V.alloc(), V.alloc(), V.alloc()
    vUq = V.alloc(8, 2); tmA = V.alloc(12, 2); vO = V.alloc(8, 2)
    a.v_and_b32(v(vI), 15, v(vLane))
    a.s_lshl_b32(s(sT0), s(sNH), 11)
    a.v_lshlrev_b32(v(vT2), 5, v(vI))
    a.v_lshrrev_b32(v(vT3), 4, v(vLane)); a.v_lshlrev_b32(v(vT3), 3, v(vT3))
    a.v_add_u32(v(vT2), v(vT2), v(vT3))
    a.s_add_u32(s(sT1), s(sT0), s(sU))
    a.v_add_u32(v(vT3), s(sT1), v(vT2))
    for t in range(4): a.ds_read_b64(v(vUq + 2 * t, 2), v(vT3), m=f"offset:{512 + 512 * t}")
    a.s_lshl_b32(s(sT1), s(sD), 12); a.s_add_u32(s(sT1), s(sT1), s(sT0)); a.s_add_u32(s(sT1), s(sT1), WS_ST)
    a.s_waitcnt("lgkmcnt(0)")
    for t in range(4):
        y = vY + 4 * t; u = vUq + 2 * t; tm = tmA + 6 * (t % 2)
        a.v_cvt_pk_bf16_f32(v(tm), v(y), v(y + 1)); a.v_cvt_pk_bf16_f32(v(tm + 1), v(y + 2), v(y + 3))
        for q in range(2):
            a.v_lshlrev_b32(v(y + 2 * q), 16, v(tm + q)); a.v_and_b32(v(y + 2 * q + 1), s(sMASK), v(tm + q))
            a.v_lshlrev_b32(v(tm + 2 + 2 * q), 16, v(u + q)); a.v_and_b32(v(tm + 3 + 2 * q), s(sMASK), v(u + q))
        for q in range(4): a.v_mul_f32(v(tm + 2 + q), v(tm + 2 + q), v(vDsk))
        a.v_cvt_pk_bf16_f32(v(tm), v(tm + 2), v(tm + 3)); a.v_cvt_pk_bf16_f32(v(tm + 1), v(tm + 4), v(tm + 5))
        for q in range(2):
            a.v_lshlrev_b32(v(tm + 2 + 2 * q), 16, v(tm + q)); a.v_and_b32(v(tm + 3 + 2 * q), s(sMASK), v(tm + q))
        for q in range(4): a.v_add_f32(v(y + q), v(y + q), v(tm + 2 + q))
        a.v_cvt_pk_bf16_f32(v(vO + 2 * t), v(y), v(y + 1)); a.v_cvt_pk_bf16_f32(v(vO + 2 * t + 1), v(y + 2), v(y + 3))
        a.buffer_store_dwordx2(v(vO + 2 * t, 2), v(vT2), s(rWS, 4), s(sT1), m=f"offen offset:{512 * t} {mods}")
    for r_, n_ in ((vT2, 1), (vT3, 1), (vI, 1), (vUq, 8), (tmA, 12), (vO, 8)): V.free(r_, n_)

def cv_channel(a, sB, sH, sD, sCH, sNH, sT0, sT1):
    a.s_and_b32(s(sT0), s(sB), 7); a.s_lshl_b32(s(sT0), s(sT0), 5)
    a.s_lshr_b32(s(sT1), s(sB), 3); a.s_add_u32(s(sT0), s(sT0), s(sT1))
    a.s_lshr_b32(s(sCH), s(sH), 1); a.s_and_b32(s(sNH), s(sH), 1)
    a.s_lshl_b32(s(sD), s(sT0), 1); a.s_add_u32(s(sD), s(sD), s(sCH))

def u_loads(a, V, vLane, sD, sNH, rWS, sT0, sT1, mods):
    vU = V.alloc(8, 4); vT = V.alloc()
    a.s_lshl_b32(s(sT0), s(sNH), 20)
    a.s_lshl_b32(s(sT1), s(sD), 4); a.s_add_u32(s(sT0), s(sT0), s(sT1))
    a.s_add_u32(s(sT0), s(sT0), WS_XNT)
    a.s_add_u32(s(sT1), s(sT0), 64 * 8192)
    a.v_lshlrev_b32(v(vT), 13, v(vLane))
    a.buffer_load_dwordx4(v(vU, 4), v(vT), s(rWS, 4), s(sT0), m="offen " + mods)
    a.buffer_load_dwordx4(v(vU + 4, 4), v(vT), s(rWS, 4), s(sT1), m="offen " + mods)
    V.free(vT)
    return vU

def u_store(a, V, vU, vLane, sU, sNH, sT0):
    vT = V.alloc()
    a.s_lshl_b32(s(sT0), s(sNH), 11); a.s_add_u32(s(sT0), s(sT0), s(sU))
    a.v_lshlrev_b32(v(vT), 4, v(vLane)); a.v_add_u32(v(vT), s(sT0), v(vT))
    a.ds_write_b128(v(vT), v(vU, 4), m="offset:512")
    a.ds_write_b128(v(vT), v(vU + 4, 4), m="offset:1536")
    V.free(vT); V.free(vU, 8)

def zero_pads(a, V, vLane, sU, sKR, sNH):
    vZ = V.alloc(4, 4); vT = V.alloc(); vT2 = V.alloc()
    for i in range(4): a.v_mov_b32(v(vZ + i), 0)
    a.v_lshlrev_b32(v(vT), 4, v(vLane))
    lz = a.newlabel("ZP")
    a.s_cmp_eq_u32(s(sNH), 0); a.s_cbranch_scc0(lz)
    a.v_add_u32(v(vT2), s(sU), v(vT))
    a.s_mov_b64("exec", "0xffffffff")
    a.ds_write_b128(v(vT2), v(vZ, 4))
    a.v_add_u32(v(vT2), s(sKR), v(vT))
    a.s_mov_b64("exec", "0xf")
    a.ds_write_b128(v(vT2), v(vZ, 4), m="offset:4096")
    a.ds_write_b128(v(vT2), v(vZ, 4), m=f"offset:{KR_COPY + 4096}")
    a.s_mov_b64("exec", -1)
    a.label(lz)
    V.free(vZ, 4); V.free(vT); V.free(vT2)

def gen_cv(name="cv_kernel", stamps=False):
    a = Asm()
    S = Stamps(a, stamps, 2)
    S.stamp(0)
    sB = 2
    P = dict(A_re=4, A_im=6, B_re=8, B_im=10, C_re=12, C_im=14, log_dt=16, Dskip=18)
    sWS = 20; rWS = 24
    sH, sT0, sT1, sT2, sCH, sD, sMASK, sTab, sKR, sU, sNH, sTabP, sGS = 28, 29, 30, 31, 32, 33, 35, 36, 37, 38, 39, 40, 41
    a.s_cmp_ge_u32(s(sB), 256); a.s_cbranch_scc1("CV_END")
    a.s_load_dwordx4(s(4, 4), s(0, 2), KA["A_re"]); a.s_load_dwordx4(s(8, 4), s(0, 2), KA["B_re"])
    a.s_load_dwordx4(s(12, 4), s(0, 2), KA["C_re"]); a.s_load_dwordx4(s(16, 4), s(0, 2), KA["log_dt"])
    a.s_load_dwordx2(s(sWS, 2), s(0, 2), KA["ws"])
    V = Alloc(256, 1)
    vLane = V.alloc(); vGA = V.alloc(); vGT = V.alloc()
    a.v_and_b32(v(vLane), 63, v(0)); a.v_lshrrev_b32(v(vGT), 6, v(0)); a.s_nop(0)
    a.v_readfirstlane_b32(s(sH), v(vGT))
    a.s_mov_b32(s(sMASK), "0xffff0000")
    L_TAB = 0; L_KR = 4 * TAB_W; L_U = L_KR + 2 * KR_CH; L_CNT = L_U + 2 * U_CH
    cv_channel(a, sB, sH, sD, sCH, sNH, sT0, sT1)
    a.s_mul_i32(s(sTab), s(sH), TAB_W); a.s_add_u32(s(sTab), s(sTab), L_TAB)
    a.s_xor_b32(s(sT0), s(sH), 1); a.s_mul_i32(s(sTabP), s(sT0), TAB_W); a.s_add_u32(s(sTabP), s(sTabP), L_TAB)
    a.s_mul_i32(s(sKR), s(sCH), KR_CH); a.s_add_u32(s(sKR), s(sKR), L_KR)
    a.s_mul_i32(s(sU), s(sCH), U_CH); a.s_add_u32(s(sU), s(sU), L_U)
    a.s_lshl_b32(s(sT0), s(sCH), 4); a.s_add_u32(s(sT0), s(sT0), L_CNT); a.v_mov_b32(v(vGA), s(sT0))
    a.v_mov_b32(v(vGT), 0); a.ds_write_b32(v(vGA), v(vGT)); a.ds_write_b32(v(vGA), v(vGT), m="offset:4"); a.ds_write_b32(v(vGA), v(vGT), m="offset:8")
    a.s_waitcnt("lgkmcnt(0)")
    a.s_barrier()
    srd(a, rWS, sWS, WS_SIZE)
    G = GroupSync(a, vGA, vGT, sT2)
    vP, vLd = cv_param_loads(a, V, P, sD, sT0, vLane, sNH)
    vU = u_loads(a, V, vLane, sD, sNH, rWS, sT0, sT1, "")
    zero_pads(a, V, vLane, sU, sKR, sNH)
    a.s_waitcnt("vmcnt(2)")
    S.stamp(1)
    vAcc, vDsk = kgen(a, V, S, vP, vLd, vLane, sTab, sT0)
    a.s_waitcnt("vmcnt(0)")
    u_store(a, V, vU, vLane, sU, sNH, sT0)
    S.stamp(2)
    pair_exchange(a, V, vAcc, vLane, sTab, sTabP, sNH, G, 0, 2)
    k_write(a, V, vAcc, vLane, sKR, sNH)
    V.free(vAcc, 32)
    a.s_waitcnt("lgkmcnt(0)")
    G.arrive(4); G.wait(4, 2)
    S.stamp(3)
    vY = conv(a, V, S, vLane, sKR, sU, sNH, sT0, sT1, sT2, "CV")
    S.stamp(4)
    pair_exchange(a, V, vY, vLane, sTab, sTabP, sNH, G, 8, 2)
    s_finish(a, V, vY, vDsk, vLane, sU, sNH, sD, sMASK, rWS, sT0, sT1, "")
    S.stamp(5)
    S.flush(6, sB, sH, rWS, 1, sT0)
    a.label("CV_END")
    a.s_endpgm()
    gen_cv.lds = L_CNT + 64
    return a, V.hi, 100 if stamps else 48
```

```python
from common import *
from p0 import tile_map
from p1 import VM, XOFF, GOFF, UOFF, SLOT
from p2 import p2_map
import cv2
from cv2 import GroupSync, TAB_W, KR_CH, U_CH
LOG2E = 1.4426950408889634
NSLOT = 6
RING2 = NSLOT * 4096
L_CV = 4 * RING2
L_TAB = L_CV; L_KR = L_TAB + 4 * TAB_W; L_U = L_KR + 2 * KR_CH
L_XS = 3 * SLOT
AUX_ST = 161792; AUX_CS = AUX_ST + 1024; L_CNT = AUX_CS + 896
LDS_TOTAL = 163840
assert L_U + 2 * U_CH <= AUX_ST and L_XS + 8192 <= AUX_ST and L_CNT + 128 <= LDS_TOTAL
F_EPOCH = WS_FLAGS; F_A = WS_FLAGS + 0x1000; F_B = WS_FLAGS + 0x2000; F_C = WS_FLAGS + 0x4000
C_KX, C_KR, C_YX = 0, 4, 8
C_S, C_H, C_RED, C_P0, C_A, C_WD = 32, 36, 40, 44, 48, 64
SPIN_MAX = 1 << 16
HS = "sc1"
HL = ""

def nonce_from(a, vE, sN):
    a.v_readfirstlane_b32(s(sN), v(vE))
    a.s_mul_i32(s(sN), s(sN), "0x9E3779B5")
    a.s_add_u32(s(sN), s(sN), "0x7F4A7C15")

def poll(a, V, rWS, sBase, vOff, lanes, wide, sN, sCnt, sleep=2):
    n = 4 if wide else 1
    vF = V.alloc(n, 4 if wide else 1)
    l = a.newlabel("POLL"); d = a.newlabel("POLLD")
    a.s_mov_b32(s(sCnt), 0)
    a.s_mov_b64("exec", hex((1 << lanes) - 1) if lanes < 64 else -1)
    a.label(l)
    if wide: a.buffer_load_dwordx4(v(vF, 4), v(vOff), s(rWS, 4), s(sBase), m="offen sc1")
    else: a.buffer_load_dword(v(vF), v(vOff), s(rWS, 4), s(sBase), m="offen sc1")
    a.s_waitcnt("vmcnt(0)")
    if wide:
        for i in range(4): a.v_xor_b32(v(vF + i), s(sN), v(vF + i))
        a.v_or_b32(v(vF), v(vF), v(vF + 1)); a.v_or_b32(v(vF + 2), v(vF + 2), v(vF + 3)); a.v_or_b32(v(vF), v(vF), v(vF + 2))
        a.v_cmp_ne_u32("vcc", 0, v(vF))
    else:
        a.v_cmp_ne_u32("vcc", s(sN), v(vF))
    a.s_nop(4)
    a.s_cbranch_vccz(d)
    a.s_sleep(sleep)
    a.s_add_u32(s(sCnt), s(sCnt), 1)
    a.s_cmp_lt_u32(s(sCnt), SPIN_MAX)
    a.s_cbranch_scc1(l)
    a.label(d)
    a.s_mov_b64("exec", -1)
    V.free(vF, n)

def publish(a, V, rWS, sOff, sN):
    vt = V.alloc(2)
    a.v_mov_b32(v(vt), 0); a.v_mov_b32(v(vt + 1), s(sN))
    a.s_mov_b64("exec", 1)
    a.buffer_store_dword(v(vt + 1), v(vt), s(rWS, 4), s(sOff), m="offen sc1")
    a.s_mov_b64("exec", -1)
    V.free(vt, 2)

def last_arriver(a, V, vGA, off, n, sT, lab_skip):
    vt = V.alloc(2)
    a.v_mov_b32(v(vt), 1)
    a.s_mov_b64("exec", 1)
    a.ds_add_rtn_u32(v(vt + 1), v(vGA), v(vt), m=f"offset:{off}")
    a.s_waitcnt("lgkmcnt(0)")
    a.v_readfirstlane_b32(s(sT), v(vt + 1))
    a.s_mov_b64("exec", -1)
    a.s_cmp_eq_u32(s(sT), n - 1)
    a.s_cbranch_scc0(lab_skip)
    V.free(vt, 2)

def gen_fused(name, stamps=False, variant=""):
    a = Asm()
    S = Stamps(a, stamps, 0)
    S.stamp(0)
    sB = 2
    sW = 3
    a.s_cmp_ge_u32(s(sB), 256 if "exit0" not in variant else 0); a.s_cbranch_scc1("F_END")
    V = Alloc(256, 1)
    vLane = V.alloc(); vT = V.alloc(); vT2 = V.alloc(); vT3 = V.alloc(); vGA = V.alloc(); vGT = V.alloc()
    a.v_lshrrev_b32(v(vT), 6, v(0)); a.v_and_b32(v(vLane), 63, v(0))
    a.v_readfirstlane_b32(s(sW), v(vT))
    a.v_mov_b32(v(vGA), L_CNT)
    a.s_cmp_ge_u32(s(sW), 4); a.s_cbranch_scc1("F_H")
    snap = V.snapshot()
    sX, sWS, sWD, sOut = 4, 6, 8, 10
    rX, rWS, rWD, rOut = 12, 16, 20, 24
    sRB, sCB, sTB, sCBK, sT0, sT1, sT2, sT3, sMASK, sN = 28, 29, 30, 31, 32, 33, 34, 35, 36, 37
    sWM, sWN, sCur, sNext, sCnt, sL, sHB, sWB, sGS = 38, 39, 40, 41, 42, 43, 44, 45, 46
    sWG, sWU, rW, sM0, sM1 = 48, 50, 52, 56, 57
    a.s_load_dwordx2(s(sX, 2), s(0, 2), KA["x"]); a.s_load_dwordx2(s(sWS, 2), s(0, 2), KA["ws"])
    a.s_load_dwordx4(s(sWG, 4), s(0, 2), KA["wg"])
    a.s_load_dwordx4(s(sWD, 4), s(0, 2), KA["wd"])
    tile_map(a, sB, sRB, sCB, sT0, sT1)
    p2_map(a, sB, sTB, sCBK, sT0)
    a.s_mov_b32(s(sMASK), "0xffff0000")
    a.s_and_b32(s(sWM), s(sW), 1); a.s_lshr_b32(s(sWN), s(sW), 1)
    snap0 = V.snapshot()
    vRow = V.alloc(8, 4); vCs0 = V.alloc(16, 4); vO1 = V.alloc(); vE = V.alloc(); vCo = V.alloc()
    a.v_lshlrev_b32(v(vO1), 4, v(vLane))
    a.v_and_b32(v(vT), 7, v(vLane)); a.v_min_u32(v(vT), 6, v(vT)); a.v_lshlrev_b32(v(vT), 4, v(vT))
    a.v_lshrrev_b32(v(vT2), 3, v(vLane)); a.v_mul_u32_u24(v(vT2), 3584, v(vT2)); a.v_add_u32(v(vCo), v(vT), v(vT2))
    a.s_lshl_b32(s(sT0), s(sB), 13); a.s_lshl_b32(s(sT1), s(sW), 11); a.s_add_u32(s(sT2), s(sT0), s(sT1))
    a.s_mul_i32(s(sT0), s(sRB), 32 * 3584); a.s_mul_i32(s(sT1), s(sCB), 224); a.s_add_u32(s(sT0), s(sT0), s(sT1))
    a.s_mul_i32(s(sT1), s(sWM), 112); a.s_add_u32(s(sT3), s(sT0), s(sT1))
    a.v_mov_b32(v(vT), 0)
    a.s_waitcnt("lgkmcnt(0)")
    srd(a, rX, sX, 2048 * 1024); srd(a, rWS, sWS, WS_SIZE)
    a.buffer_load_dwordx4(v(vRow, 4), v(vO1), s(rX, 4), s(sT2), m="offen")
    a.buffer_load_dwordx4(v(vRow + 4, 4), v(vO1), s(rX, 4), s(sT2), m="offen offset:1024")
    a.s_mov_b32(s(sT0), F_EPOCH)
    a.buffer_load_dword(v(vE), v(vT), s(rWS, 4), s(sT0), m="offen sc1")
    a.s_cmp_eq_u32(s(sWN), 1)
    a.s_cselect_b32(s(rW), s(sWU), s(sWG)); a.s_cselect_b32(s(rW + 1), s(sWU + 1), s(sWG + 1))
    a.s_and_b32(s(rW + 1), s(rW + 1), 0xffff); a.s_mov_b32(s(rW + 2), hex(512 * 3584)); a.s_mov_b32(s(rW + 3), hex(SRD3))
    for i in range(4):
        a.buffer_load_dwordx4(v(vCs0 + 4 * i, 4), v(vCo), s(rW, 4), s(sT3), m="offen")
        if i < 3: a.s_add_u32(s(sT3), s(sT3), 8 * 3584)
    srd(a, rWD, sWD, 1792 * 1024); srd(a, rOut, sOut, 2048 * 1024)
    a.s_barrier()
    S.stamp(1)
    a.s_waitcnt("vmcnt(4)")
    nonce_from(a, vE, sN)
    vF = V.alloc(16, 2); vS = V.alloc(2); vMean = V.alloc(2); vVar = V.alloc(2); vSt = V.alloc(4, 4); vDv = V.alloc(16, 2)
    for r in range(2):
        for q in range(4):
            a.v_lshlrev_b32(v(vF + 8 * r + 2 * q), 16, v(vRow + 4 * r + q)); a.v_and_b32(v(vF + 8 * r + 2 * q + 1), s(sMASK), v(vRow + 4 * r + q))
    for r in range(2):
        a.v_add_f32(v(vS + r), v(vF + 8 * r), v(vF + 8 * r + 1))
        for q in range(2, 8): a.v_add_f32(v(vS + r), v(vS + r), v(vF + 8 * r + q))
    wave_sum_dpp(a, [vS, vS + 1])
    a.v_readlane_b32(s(sM0), v(vS), 63); a.v_readlane_b32(s(sM1), v(vS + 1), 63)
    a.v_mov_b32(v(vT), f32hex(1.0 / 512))
    a.v_mul_f32(v(vMean), s(sM0), v(vT)); a.v_mul_f32(v(vMean + 1), s(sM1), v(vT))
    for r in range(2):
        for q in range(8): a.v_sub_f32(v(vDv + 8 * r + q), v(vF + 8 * r + q), v(vMean + r))
    for r in range(2):
        a.v_mul_f32(v(vS + r), v(vDv + 8 * r), v(vDv + 8 * r))
        for q in range(1, 8): a.v_fmac_f32(v(vS + r), v(vDv + 8 * r + q), v(vDv + 8 * r + q))
    wave_sum_dpp(a, [vS, vS + 1])
    a.v_readlane_b32(s(sM0), v(vS), 63); a.v_readlane_b32(s(sM1), v(vS + 1), 63)
    a.v_mul_f32(v(vVar), s(sM0), v(vT)); a.v_mul_f32(v(vVar + 1), s(sM1), v(vT))
    for r in range(2): bf16_round(a, vSt + 2 * r, vMean + r)
    for r in range(2): bf16_round(a, vVar + r, vVar + r)
    for r in range(2): a.v_add_f32(v(vVar + r), f32hex(1e-5), v(vVar + r))
    for r in range(2): bf16_round(a, vVar + r, vVar + r)
    for r in range(2): a.v_sqrt_f32(v(vVar + r), v(vVar + r))
    for r in range(2): bf16_round(a, vVar + r, vVar + r)
    for r in range(2): a.v_rcp_f32(v(vSt + 2 * r + 1), v(vVar + r))
    for r in range(2):
        for q in range(8): a.v_sub_f32(v(vF + 8 * r + q), v(vF + 8 * r + q), v(vSt + 2 * r))
    for r in range(2):
        for q in range(4): a.v_cvt_pk_bf16_f32(v(vRow + 4 * r + q), v(vF + 8 * r + 2 * q), v(vF + 8 * r + 2 * q + 1))
    for r in range(2):
        for q in range(4):
            a.v_lshlrev_b32(v(vF + 8 * r + 2 * q), 16, v(vRow + 4 * r + q)); a.v_and_b32(v(vF + 8 * r + 2 * q + 1), s(sMASK), v(vRow + 4 * r + q))
    for r in range(2):
        for q in range(8): a.v_mul_f32(v(vF + 8 * r + q), v(vF + 8 * r + q), v(vSt + 2 * r + 1))
    for r in range(2):
        for q in range(4): a.v_cvt_pk_bf16_f32(v(vRow + 4 * r + q), v(vF + 8 * r + 2 * q), v(vF + 8 * r + 2 * q + 1))
    XP = 1040
    a.s_mul_i32(s(sT0), s(sW), 2 * XP); a.s_add_u32(s(sT0), s(sT0), L_XS)
    a.v_add_u32(v(vT), s(sT0), v(vO1))
    a.ds_write_b128(v(vT), v(vRow, 4)); a.ds_write_b128(v(vT), v(vRow + 4, 4), m=f"offset:{XP}")
    a.s_lshl_b32(s(sT0), s(sB), 6); a.s_lshl_b32(s(sT1), s(sW), 4); a.s_add_u32(s(sT0), s(sT0), s(sT1)); a.s_add_u32(s(sT0), s(sT0), WS_STATS)
    a.v_mov_b32(v(vT), 0)
    a.s_mov_b64("exec", 1)
    a.buffer_store_dwordx4(v(vSt, 4), v(vT), s(rWS, 4), s(sT0), m=f"offen {HS}")
    a.s_mov_b64("exec", -1)
    G0 = GroupSync(a, vGA, vGT, sGS)
    a.s_waitcnt("lgkmcnt(0)")
    G0.arrive(C_P0)
    a.s_waitcnt("vmcnt(1)")
    vA = vF; vBt = vDv
    for i in range(4):
        for q in range(4):
            src = vCs0 + 4 * i + q
            if i == 0:
                a.v_lshlrev_b32(v(vA + 2 * q), 16, v(src)); a.v_and_b32(v(vA + 2 * q + 1), s(sMASK), v(src))
            else:
                a.v_lshlrev_b32(v(vT2), 16, v(src)); a.v_and_b32(v(vT3), s(sMASK), v(src))
                a.v_add_f32(v(vA + 2 * q), v(vA + 2 * q), v(vT2)); a.v_add_f32(v(vA + 2 * q + 1), v(vA + 2 * q + 1), v(vT3))
    G0.wait(C_P0, 4)
    vXn = vRow
    a.v_bfe_u32(v(vT), v(vLane), 2, 2); a.v_mul_u32_u24(v(vT), XP, v(vT))
    a.v_lshrrev_b32(v(vT2), 4, v(vLane)); a.v_lshlrev_b32(v(vT2), 5, v(vT2)); a.v_add_u32(v(vT), v(vT), v(vT2))
    a.v_and_b32(v(vT2), 3, v(vLane)); a.v_lshl_add_u32(v(vT), v(vT2), 3, v(vT))
    a.s_lshl_b32(s(sT0), s(sW), 8); a.s_add_u32(s(sT0), s(sT0), L_XS); a.v_add_u32(v(vT), s(sT0), v(vT))
    for half in range(2):
        a.ds_read_b64_tr_b16(v(vXn + 4 * half, 2), v(vT), m=f"offset:{128 * half}")
        a.ds_read_b64_tr_b16(v(vXn + 4 * half + 2, 2), v(vT), m=f"offset:{128 * half + 4 * XP}")
    for q in range(8): a.v_add_f32_dpp(v(vA + q), v(vA + q), v(vA + q), m="row_ror:8 row_mask:0xf bank_mask:0xf")
    for q in range(8): a.v_mov_b32(v(vBt + q), v(vA + q))
    a.s_waitcnt("lgkmcnt(0)")
    a.s_lshl_b32(s(sT0), s(sB), 13); a.s_lshl_b32(s(sT1), s(sW), 11); a.s_add_u32(s(sT0), s(sT0), s(sT1)); a.s_add_u32(s(sT0), s(sT0), WS_XNT)
    a.buffer_store_dwordx4(v(vXn, 4), v(vO1), s(rWS, 4), s(sT0), m=f"offen {HS}")
    a.buffer_store_dwordx4(v(vXn + 4, 4), v(vO1), s(rWS, 4), s(sT0), m=f"offen offset:1024 {HS}")
    for q in range(8): a.v_permlane16_swap_b32(v(vA + q), v(vBt + q))
    for q in range(8): a.v_add_f32(v(vA + q), v(vA + q), v(vBt + q))
    for q in range(8): a.v_mov_b32(v(vBt + q), v(vA + q))
    for q in range(8): a.v_permlane32_swap_b32(v(vA + q), v(vBt + q))
    for q in range(8): a.v_add_f32(v(vA + q), v(vA + q), v(vBt + q))
    a.s_lshl_b32(s(sT0), s(sCB), 4); a.s_add_u32(s(sT0), s(sT0), s(sRB)); a.s_mul_i32(s(sT0), s(sT0), 896)
    a.s_mul_i32(s(sT1), s(sW), 224); a.s_add_u32(s(sT0), s(sT0), s(sT1)); a.s_add_u32(s(sT0), s(sT0), WS_CSP)
    a.v_lshlrev_b32(v(vT), 5, v(vLane))
    a.s_mov_b64("exec", "0x7f")
    a.buffer_store_dwordx4(v(vA, 4), v(vT), s(rWS, 4), s(sT0), m=f"offen {HS}")
    a.buffer_store_dwordx4(v(vA + 4, 4), v(vT), s(rWS, 4), s(sT0), m=f"offen offset:16 {HS}")
    a.s_mov_b64("exec", -1)
    a.s_nop(1)
    V.restore(snap0)
    vAcc = V.alloc(112, 4)
    setW = [V.alloc(28, 4), V.alloc(28, 4)]
    setX = [V.alloc(16, 4), V.alloc(16, 4)]
    vWb, vX0b, vX1b = V.alloc(), V.alloc(), V.alloc()
    vWc, vX1c, vWn, vX0n = V.alloc(), V.alloc(), V.alloc(), V.alloc()
    a.v_lshrrev_b32(v(vT), 4, v(vLane)); a.v_lshlrev_b32(v(vT), 3, v(vT))
    a.v_bfe_u32(v(vT2), v(vLane), 2, 2); a.v_add_u32(v(vT), v(vT), v(vT2))
    a.v_mul_u32_u24(v(vWb), 240, v(vT))
    a.v_bfe_u32(v(vT), v(vLane), 1, 1); a.v_mul_u32_u24(v(vT), 15424, v(vT)); a.v_add_u32(v(vWb), v(vWb), v(vT))
    a.v_and_b32(v(vT), 1, v(vLane)); a.v_lshlrev_b32(v(vT), 3, v(vT)); a.v_add_u32(v(vWb), v(vWb), v(vT))
    a.s_mul_i32(s(sT0), s(sWM), 112); a.s_add_u32(s(sT0), s(sT0), GOFF); a.v_add_u32(v(vWb), s(sT0), v(vWb))
    a.v_and_b32(v(vT), 15, v(vLane)); a.v_lshrrev_b32(v(vT2), 1, v(vT)); a.v_lshrrev_b32(v(vT3), 4, v(vLane))
    a.v_xor_b32(v(vT2), v(vT2), v(vT3)); a.v_lshlrev_b32(v(vT2), 4, v(vT2))
    a.v_lshl_add_u32(v(vX0b), v(vT), 7, v(vT2))
    a.s_lshl_b32(s(sT0), s(sWN), 13); a.v_add_u32(v(vX0b), s(sT0), v(vX0b)); a.v_xor_b32(v(vX1b), 64, v(vX0b))
    for i in range(112): a.v_mov_b32(v(vAcc + i), 0)
    a.s_mov_b32(s(sCur), 0); a.s_mov_b32(s(sNext), SLOT); a.s_mov_b32(s(sCnt), 0)
    def reads(setidx, vW, vX, sub):
        out = []
        for nt in range(4): out.append(f"    ds_read_b128 {v(setX[setidx] + 4 * nt, 4)}, {v(vX)} offset:{nt * 2048}")
        for mt in range(7):
            for hf in range(2):
                out.append(f"    ds_read_b64_tr_b16 {v(setW[setidx] + 4 * mt + 2 * hf, 2)}, {v(vW)} offset:{sub * 7680 + hf * 960 + mt * 16}")
        return out
    def substep(setidx, rds):
        k = 0
        for mt in range(7):
            for nt in range(4):
                acc = v(vAcc + (mt * 4 + nt) * 4, 4)
                a.v_mfma_f32_16x16x32_bf16(acc, v(setW[setidx] + 4 * mt, 4), v(setX[setidx] + 4 * nt, 4), acc)
                if k < len(rds): a.emit(rds[k])
                k += 1
    S.stamp(2)
    a.s_barrier()
    S.stamp(10)
    for rd in reads(0, vWb, vX0b, 0): a.emit(rd)
    a.label("F_LOOP")
    a.v_add_u32(v(vWc), s(sCur), v(vWb)); a.v_add_u32(v(vX1c), s(sCur), v(vX1b))
    a.v_add_u32(v(vWn), s(sNext), v(vWb)); a.v_add_u32(v(vX0n), s(sNext), v(vX0b))
    a.s_waitcnt("lgkmcnt(0)")
    substep(0, reads(1, vWc, vX1c, 1))
    a.s_waitcnt("lgkmcnt(0)")
    a.s_barrier()
    a.s_cmp_eq_u32(s(sCnt), 1); a.s_cbranch_scc0("F_NOA")
    a.s_waitcnt("vmcnt(0)")
    last_arriver(a, V, vGA, C_A, 4, sT0, "F_NOA")
    a.s_lshl_b32(s(sT0), s(sB), 2); a.s_add_u32(s(sT0), s(sT0), F_A)
    publish(a, V, rWS, sT0, sN)
    a.label("F_NOA")
    substep(1, reads(0, vWn, vX0n, 0))
    a.s_mov_b32(s(sCur), s(sNext)); a.s_add_u32(s(sNext), s(sNext), SLOT)
    a.s_cmp_eq_u32(s(sNext), 3 * SLOT); a.s_cselect_b32(s(sNext), 0, s(sNext))
    a.s_add_u32(s(sCnt), s(sCnt), 1); a.s_cmp_lt_u32(s(sCnt), 8); a.s_cbranch_scc1("F_LOOP")
    a.s_waitcnt("lgkmcnt(0)")
    S.stamp(3)
    for st_ in setW: V.free(st_, 28)
    for st_ in setX: V.free(st_, 16)
    for r_ in (vWb, vX0b, vX1b, vWc, vX1c, vWn, vX0n): V.free(r_)
    vDo = V.alloc()
    a.s_mul_i32(s(sL), s(sW), RING2)
    a.v_lshrrev_b32(v(vT), 4, v(vLane)); a.v_lshlrev_b32(v(vT), 1, v(vT)); a.v_and_b32(v(vT), 6, v(vT))
    a.v_and_b32(v(vT2), 7, v(vLane)); a.v_xor_b32(v(vT), v(vT), v(vT2)); a.v_lshlrev_b32(v(vT), 4, v(vT))
    a.v_lshrrev_b32(v(vT2), 3, v(vLane)); a.v_lshl_add_u32(v(vDo), v(vT2), 10, v(vT))
    a.s_mul_i32(s(sT0), s(sW), 14 * 32 * 1024); a.s_lshl_b32(s(sT1), s(sCBK), 7); a.s_add_u32(s(sWB), s(sT0), s(sT1))
    vm = VM(a)
    wtok = {}; htok = {}
    def issue_w(p):
        for q in range(4):
            a.s_add_u32("m0", s(sL), (p % NSLOT) * 4096 + q * 1024)
            a.s_add_u32(s(sT0), s(sWB), (32 * p + 8 * q) * 1024)
            a.buffer_load_dwordx4(v(vDo), s(rWD, 4), s(sT0), m="offen lds")
            wtok[p] = vm.issue()
    vCs = V.alloc(56, 4); vSt = V.alloc(4, 2); vC1 = V.alloc(4, 2); vOne = V.alloc(2, 2)
    a.v_bfe_u32(v(vT), v(vLane), 4, 1); a.v_lshlrev_b32(v(vT), 4, v(vT))
    a.s_mul_i32(s(sT0), s(sWM), 224); a.s_add_u32(s(sT0), s(sT0), AUX_CS); a.v_add_u32(v(vT), s(sT0), v(vT))
    for mat in range(2):
        for mt in range(7): a.ds_read_b128(v(vCs + (mat * 7 + mt) * 4, 4), v(vT), m=f"offset:{mat * 448 + mt * 32}")
    a.v_lshrrev_b32(v(vT2), 5, v(vLane)); a.v_lshlrev_b32(v(vT2), 4, v(vT2)); a.v_and_b32(v(vT3), 15, v(vLane))
    a.v_add_u32(v(vT2), v(vT2), v(vT3)); a.v_lshlrev_b32(v(vT2), 3, v(vT2))
    a.s_lshl_b32(s(sT0), s(sWN), 9); a.s_add_u32(s(sT0), s(sT0), AUX_ST); a.v_add_u32(v(vT2), s(sT0), v(vT2))
    a.ds_read_b64(v(vSt, 2), v(vT2)); a.ds_read_b64(v(vSt + 2, 2), v(vT2), m="offset:256")
    a.v_mov_b32(v(vOne), 1.0); a.v_mov_b32(v(vOne + 1), 1.0)
    vSO = V.alloc()
    a.v_lshrrev_b32(v(vT), 5, v(vLane)); a.s_mov_b32(s(sT0), HF_TT); a.v_mul_lo_u32(v(vSO), v(vT), s(sT0))
    a.v_bfe_u32(v(vT), v(vLane), 4, 1); a.v_lshl_add_u32(v(vSO), v(vT), 8, v(vSO)); a.v_lshl_add_u32(v(vSO), v(vT3), 4, v(vSO))
    a.s_lshl_b32(s(sT0), s(sRB), 3); a.s_lshl_b32(s(sT1), s(sWN), 2); a.s_add_u32(s(sT0), s(sT0), s(sT1))
    a.s_mul_i32(s(sT0), s(sT0), HF_TT); a.s_mul_i32(s(sT1), s(sCB), 7 * 512); a.s_add_u32(s(sT0), s(sT0), s(sT1))
    a.s_add_u32(s(sT2), s(sT0), WS_HF); a.s_add_u32(s(sT3), s(sT2), 2 * HF_TT)
    a.s_waitcnt("lgkmcnt(0)")
    for np_ in range(2): a.v_mul_f32(v(vC1 + 2 * np_), f32hex(-LOG2E), v(vSt + 2 * np_ + 1))
    vH = V.alloc(18, 2)
    tmp = [V.alloc(8, 2) for _ in range(2)]
    for np_ in range(2):
        nt0, nt1 = 2 * np_, 2 * np_ + 1
        mreg = v(vSt + 2 * np_, 2); c1 = v(vC1 + 2 * np_, 2)
        for g0 in range(0, 7, 2):
            grp = list(range(7))[g0:g0 + 2]
            X = {mt: vAcc + (mt * 4 + nt0) * 4 for mt in grp}; Y = {mt: vAcc + (mt * 4 + nt1) * 4 for mt in grp}
            T = {mt: tmp[i] for i, mt in enumerate(grp)}
            for mt in grp:
                for r in range(4): a.v_permlane32_swap_b32(v(X[mt] + r), v(Y[mt] + r))
            for mt in grp:
                for hf in range(2):
                    a.v_pk_fma_f32(v(X[mt] + 2 * hf, 2), v(vCs + mt * 4 + 2 * hf, 2), mreg, v(X[mt] + 2 * hf, 2), m="op_sel_hi:[1,0,1] neg_lo:[0,1,0] neg_hi:[0,1,0]")
                    a.v_pk_fma_f32(v(Y[mt] + 2 * hf, 2), v(vCs + (7 + mt) * 4 + 2 * hf, 2), mreg, v(Y[mt] + 2 * hf, 2), m="op_sel_hi:[1,0,1] neg_lo:[0,1,0] neg_hi:[0,1,0]")
            for mt in grp:
                for hf in range(2): a.v_pk_mul_f32(v(T[mt] + 2 * hf, 2), v(X[mt] + 2 * hf, 2), c1, m="op_sel_hi:[1,0]")
            for mt in grp:
                for r in range(4): a.v_exp_f32(v(T[mt] + r), v(T[mt] + r))
            for mt in grp:
                for hf in range(2): a.v_pk_mul_f32(v(T[mt] + 4 + 2 * hf, 2), v(X[mt] + 2 * hf, 2), v(Y[mt] + 2 * hf, 2))
            for mt in grp:
                for hf in range(2): a.v_pk_add_f32(v(T[mt] + 2 * hf, 2), v(T[mt] + 2 * hf, 2), v(vOne, 2))
            for mt in grp:
                for r in range(4): a.v_rcp_f32(v(T[mt] + r), v(T[mt] + r))
            for mt in grp:
                for hf in range(2): a.v_pk_mul_f32(v(T[mt] + 4 + 2 * hf, 2), v(T[mt] + 4 + 2 * hf, 2), v(T[mt] + 2 * hf, 2))
            for mt in grp:
                for hf in range(2): a.v_cvt_pk_bf16_f32(v(vH + 2 + 2 * mt + hf), v(T[mt] + 4 + 2 * hf), v(T[mt] + 5 + 2 * hf))
        so = s(sT2) if np_ == 0 else s(sT3)
        l1 = a.newlabel("F_WM1"); l2 = a.newlabel("F_ST")
        a.s_cmp_eq_u32(s(sWM), 1); a.s_cbranch_scc1(l1)
        for i in range(3): a.buffer_store_dwordx4(v(vH + 2 + 4 * i, 4), v(vSO), s(rWS, 4), so, m=f"offen offset:{i * 512} {HS}")
        a.buffer_store_dwordx2(v(vH + 14, 2), v(vSO), s(rWS, 4), so, m=f"offen offset:{3 * 512} {HS}")
        a.s_branch(l2)
        a.label(l1)
        a.buffer_store_dwordx2(v(vH + 2, 2), v(vSO), s(rWS, 4), so, m=f"offen offset:{3 * 512 + 8} {HS}")
        for i in range(3): a.buffer_store_dwordx4(v(vH + 4 + 4 * i, 4), v(vSO), s(rWS, 4), so, m=f"offen offset:{(4 + i) * 512} {HS}")
        a.label(l2)
        vm.issue(4)
    S.stamp(4)
    V.free(vAcc, 112); V.free(vCs, 56); V.free(vSt, 4); V.free(vC1, 4); V.free(vOne, 2); V.free(vSO); V.free(vH, 18)
    for t_ in tmp: V.free(t_, 8)
    vAcc = V.alloc(64, 4); vHb = V.alloc(64, 4); vWf = V.alloc(32, 4); vHo = V.alloc(); vTr = V.alloc(4)
    a.v_lshlrev_b32(v(vHo), 4, v(vLane))
    a.v_bfe_u32(v(vT), v(vLane), 5, 1); a.v_lshlrev_b32(v(vT), 4, v(vT))
    a.v_bfe_u32(v(vT2), v(vLane), 4, 1); a.v_lshl_add_u32(v(vT), v(vT2), 2, v(vT))
    a.v_bfe_u32(v(vT3), v(vLane), 2, 2); a.v_add_u32(v(vT), v(vT), v(vT3)); a.v_lshlrev_b32(v(vT), 7, v(vT))
    a.v_lshrrev_b32(v(vT3), 1, v(vT3)); a.v_lshl_add_u32(v(vT2), v(vT2), 1, v(vT3))
    a.v_and_b32(v(vT3), 3, v(vLane)); a.v_lshl_add_u32(v(vT), v(vT3), 3, v(vT)); a.v_add_u32(v(vT), s(sL), v(vT))
    for ct in range(4): a.v_xor_b32(v(vT3), ct, v(vT2)); a.v_lshl_add_u32(v(vTr + ct), v(vT3), 5, v(vT))
    for i in range(64): a.v_mov_b32(v(vAcc + i), 0)
    a.s_lshl_b32(s(sT0), s(sTB), 2); a.s_mul_i32(s(sT0), s(sT0), HF_TT)
    a.s_mul_i32(s(sT1), s(sW), 14 * 1024); a.s_add_u32(s(sT0), s(sT0), s(sT1)); a.s_add_u32(s(sHB), s(sT0), WS_HF)
    a.s_waitcnt("vmcnt(0)")
    S.stamp(5)
    lp = a.newlabel("F_PB")
    last_arriver(a, V, vGA, C_H, 4, sT0, lp)
    a.s_lshl_b32(s(sT0), s(sRB), 8); a.s_lshr_b32(s(sT1), s(sCB), 2); a.s_lshl_b32(s(sT1), s(sT1), 6); a.s_add_u32(s(sT0), s(sT0), s(sT1))
    a.s_and_b32(s(sT1), s(sCB), 3); a.s_lshl_b32(s(sT1), s(sT1), 2); a.s_add_u32(s(sT0), s(sT0), s(sT1)); a.s_add_u32(s(sT0), s(sT0), F_B)
    publish(a, V, rWS, sT0, sN)
    a.label(lp)
    a.s_lshl_b32(s(sT0), s(sW), 2); a.s_add_u32(s(sT0), s(sT0), L_CNT); a.v_mov_b32(v(vT), s(sT0))
    GroupSync(a, vT, vGT, sGS).wait(C_WD, 1)
    def read_w(p):
        for ct in range(4):
            for hf in range(2):
                a.ds_read_b64_tr_b16(v(vWf + 16 * (p % 2) + 4 * ct + 2 * hf, 2), v(vTr + ct), m=f"offset:{(p % NSLOT) * 4096 + hf * 1024}")
    read_w(0)
    vPo = V.alloc()
    a.v_lshrrev_b32(v(vPo), 2, v(vLane)); a.v_lshlrev_b32(v(vPo), 6, v(vPo)); a.v_and_b32(v(vT), 3, v(vLane)); a.v_lshl_add_u32(v(vPo), v(vT), 2, v(vPo))
    a.s_lshr_b32(s(sT0), s(sTB), 1); a.s_lshl_b32(s(sT0), s(sT0), 8); a.s_add_u32(s(sT0), s(sT0), F_B)
    poll(a, V, rWS, sT0, vPo, 16, False, sN, sT1)
    S.stamp(6)
    vm = VM(a); htok = {}; wtok2 = {}
    def issue_h(p):
        for tt in range(4):
            a.s_add_u32(s(sT0), s(sHB), tt * HF_TT + p * 1024)
            a.buffer_load_dwordx4(v(vHb + 16 * (p % 4) + 4 * tt, 4), v(vHo), s(rWS, 4), s(sT0), m=f"offen {HL}")
            htok[p] = vm.issue()
    def issue_w2(p):
        for q in range(4):
            a.s_add_u32("m0", s(sL), (p % NSLOT) * 4096 + q * 1024)
            a.s_add_u32(s(sT0), s(sWB), (32 * p + 8 * q) * 1024)
            a.buffer_load_dwordx4(v(vDo), s(rWD, 4), s(sT0), m="offen lds")
            wtok2[p] = vm.issue()
    for p in range(4): issue_h(p)
    for p in range(14):
        toks = [htok[p]] + ([wtok2[p + 1]] if (p + 1) in wtok2 else [])
        vm.wait(max(toks))
        if p in (0, 4, 8, 12): S.stamp(12 + p // 4)
        a.s_waitcnt("lgkmcnt(0)")
        if p + 1 < 14: read_w(p + 1)
        for tt in range(4):
            for ct in range(4):
                acc = v(vAcc + (ct * 4 + tt) * 4, 4)
                a.v_mfma_f32_16x16x32_bf16(acc, v(vWf + 16 * (p % 2) + 4 * ct, 4), v(vHb + 16 * (p % 4) + 4 * tt, 4), acc)
                if ct == 1 and p + NSLOT < 14:
                    pp = p + NSLOT
                    a.s_add_u32("m0", s(sL), (pp % NSLOT) * 4096 + tt * 1024)
                    a.s_add_u32(s(sT0), s(sWB), (32 * pp + 8 * tt) * 1024)
                    a.buffer_load_dwordx4(v(vDo), s(rWD, 4), s(sT0), m="offen lds")
                    wtok2[pp] = vm.issue()
            if p + 4 < 14:
                a.s_add_u32(s(sT0), s(sHB), tt * HF_TT + (p + 4) * 1024)
                a.buffer_load_dwordx4(v(vHb + 16 * (p % 4) + 4 * tt, 4), v(vHo), s(rWS, 4), s(sT0), m=f"offen {HL}")
                htok[p + 4] = vm.issue()
    S.stamp(7)
    vTok, vRG = V.alloc(), V.alloc()
    a.v_and_b32(v(vTok), 15, v(vLane)); a.v_lshrrev_b32(v(vRG), 4, v(vLane))
    vR = V.alloc(8, 2); vX = V.alloc(8, 2); vS = V.alloc(8, 4); vXo = V.alloc()
    a.s_lshl_b32(s(sT0), s(sTB), 9); a.s_add_u32(s(sT0), s(sT0), WS_STATS)
    a.v_lshlrev_b32(v(vT), 3, v(vTok))
    for tt in range(4): a.buffer_load_dwordx2(v(vR + 2 * tt, 2), v(vT), s(rWS, 4), s(sT0), m=f"offen offset:{128 * tt} {HS}")
    a.v_lshlrev_b32(v(vXo), 10, v(vTok)); a.v_lshl_add_u32(v(vXo), v(vRG), 3, v(vXo))
    sXB = sT3
    a.s_lshl_b32(s(sXB), s(sTB), 16); a.s_lshl_b32(s(sT2), s(sCBK), 7); a.s_add_u32(s(sXB), s(sXB), s(sT2))
    a.s_lshl_b32(s(sT2), s(sW), 5); a.s_add_u32(s(sXB), s(sXB), s(sT2))
    for tt in range(4):
        a.s_add_u32(s(sT0), s(sXB), tt * 16384)
        a.buffer_load_dwordx2(v(vX + 2 * tt, 2), v(vXo), s(rX, 4), s(sT0), m="offen")
    a.v_lshlrev_b32(v(vT3), 4, v(vLane)); a.v_add_u32(v(vT2), s(sL), v(vT3))
    for d in range(1, 4):
        a.s_add_u32(s(sT0), s(sW), d); a.s_and_b32(s(sT0), s(sT0), 3)
        lend = a.newlabel("F_W")
        for ct in range(4):
            ln = a.newlabel("F_WN")
            a.s_cmp_eq_u32(s(sT0), ct); a.s_cbranch_scc0(ln)
            for tt in range(4): a.ds_write_b128(v(vT2), v(vAcc + (ct * 4 + tt) * 4, 4), m=f"offset:{(d - 1) * 4096 + tt * 1024}")
            a.s_branch(lend)
            a.label(ln)
        a.label(lend)
    vF = V.alloc(16, 4)
    lend = a.newlabel("F_M")
    for ct in range(4):
        ln = a.newlabel("F_MN")
        a.s_cmp_eq_u32(s(sW), ct); a.s_cbranch_scc0(ln)
        for i in range(16): a.v_mov_b32(v(vF + i), v(vAcc + ct * 16 + i))
        a.s_branch(lend)
        a.label(ln)
    a.label(lend)
    a.s_waitcnt("lgkmcnt(0)")
    G = GroupSync(a, vGA, vGT, sGS)
    G.arrive(C_RED)
    a.s_lshl_b32(s(sT0), s(sCBK), 9); a.s_add_u32(s(sT0), s(sT0), F_C)
    poll(a, V, rWS, sT0, vPo, 32, False, sN, sT1)
    S.stamp(8)
    a.v_lshrrev_b32(v(vT), 2, v(vLane)); a.v_lshlrev_b32(v(vT), 12, v(vT))
    a.v_and_b32(v(vT2), 3, v(vLane)); a.v_lshl_add_u32(v(vT), v(vT2), 5, v(vT))
    a.s_lshl_b32(s(sT0), s(sCBK), 6); a.s_lshl_b32(s(sT1), s(sW), 4); a.s_add_u32(s(sT0), s(sT0), s(sT1))
    a.s_lshl_b32(s(sT0), s(sT0), 12); a.s_lshl_b32(s(sT1), s(sTB), 7); a.s_add_u32(s(sT0), s(sT0), s(sT1)); a.s_add_u32(s(sT0), s(sT0), WS_ST)
    a.buffer_load_dwordx4(v(vS, 4), v(vT), s(rWS, 4), s(sT0), m=f"offen {HS}")
    a.buffer_load_dwordx4(v(vS + 4, 4), v(vT), s(rWS, 4), s(sT0), m=f"offen offset:16 {HS}")
    G.wait(C_RED, 4)
    vP = vHb
    for d in range(1, 4):
        a.s_sub_u32(s(sT0), s(sW), d); a.s_and_b32(s(sT0), s(sT0), 3); a.s_mul_i32(s(sT0), s(sT0), RING2)
        a.v_add_u32(v(vT2), s(sT0), v(vT3))
        for tt in range(4): a.ds_read_b128(v(vP + 16 * (d - 1) + 4 * tt, 4), v(vT2), m=f"offset:{(d - 1) * 4096 + tt * 1024}")
    a.s_waitcnt("vmcnt(0)")
    a.v_lshrrev_b32(v(vT), 2, v(vLane)); a.v_lshlrev_b32(v(vT), 7, v(vT))
    a.v_and_b32(v(vT2), 3, v(vLane)); a.v_lshl_add_u32(v(vT), v(vT2), 5, v(vT)); a.v_add_u32(v(vT), s(sL), v(vT))
    a.ds_write_b128(v(vT), v(vS, 4), m="offset:12288"); a.ds_write_b128(v(vT), v(vS + 4, 4), m="offset:12304")
    a.v_lshlrev_b32(v(vT), 2, v(vRG)); a.v_bfe_u32(v(vT3), v(vLane), 2, 2); a.v_add_u32(v(vT), v(vT), v(vT3))
    a.v_lshlrev_b32(v(vT), 7, v(vT)); a.v_and_b32(v(vT3), 3, v(vLane)); a.v_lshl_add_u32(v(vT), v(vT3), 3, v(vT)); a.v_add_u32(v(vT), s(sL), v(vT))
    a.s_waitcnt("lgkmcnt(0)")
    for tt in range(4): a.ds_read_b64_tr_b16(v(vS + 2 * tt, 2), v(vT), m=f"offset:{12288 + tt * 32}")
    for d in range(3):
        for i in range(16): a.v_add_f32(v(vF + i), v(vF + i), v(vP + 16 * d + i))
    a.s_waitcnt("lgkmcnt(0)")
    tm = vWf
    for tt in range(4):
        f = vF + 4 * tt; r_ = vR + 2 * tt + 1
        a.v_mul_f32(v(tm), v(r_), v(r_))
        for q in range(4): a.v_mul_f32(v(f + q), v(f + q), v(tm))
        a.v_cvt_pk_bf16_f32(v(tm), v(f), v(f + 1)); a.v_cvt_pk_bf16_f32(v(tm + 1), v(f + 2), v(f + 3))
        for q in range(2): a.v_lshlrev_b32(v(f + 2 * q), 16, v(tm + q)); a.v_and_b32(v(f + 2 * q + 1), s(sMASK), v(tm + q))
        for q in range(4): a.v_mul_f32(v(tm + 2 + q), f32hex(-LOG2E), v(f + q))
        for q in range(4): a.v_exp_f32(v(tm + 2 + q), v(tm + 2 + q))
        for q in range(4): a.v_add_f32(v(tm + 2 + q), 1.0, v(tm + 2 + q))
        for q in range(4): a.v_rcp_f32(v(tm + 2 + q), v(tm + 2 + q))
        for q in range(4): a.v_mul_f32(v(f + q), v(f + q), v(tm + 2 + q))
        a.v_cvt_pk_bf16_f32(v(tm), v(f), v(f + 1)); a.v_cvt_pk_bf16_f32(v(tm + 1), v(f + 2), v(f + 3))
        for q in range(2):
            a.v_lshlrev_b32(v(f + 2 * q), 16, v(tm + q)); a.v_and_b32(v(f + 2 * q + 1), s(sMASK), v(tm + q))
            a.v_lshlrev_b32(v(tm + 2 + 2 * q), 16, v(vS + 2 * tt + q)); a.v_and_b32(v(tm + 3 + 2 * q), s(sMASK), v(vS + 2 * tt + q))
        for q in range(4): a.v_mul_f32(v(f + q), v(f + q), v(tm + 2 + q))
        a.v_cvt_pk_bf16_f32(v(tm), v(f), v(f + 1)); a.v_cvt_pk_bf16_f32(v(tm + 1), v(f + 2), v(f + 3))
        for q in range(2):
            a.v_lshlrev_b32(v(f + 2 * q), 16, v(tm + q)); a.v_and_b32(v(f + 2 * q + 1), s(sMASK), v(tm + q))
            a.v_lshlrev_b32(v(tm + 2 + 2 * q), 16, v(vX + 2 * tt + q)); a.v_and_b32(v(tm + 3 + 2 * q), s(sMASK), v(vX + 2 * tt + q))
        for q in range(4): a.v_add_f32(v(f + q), v(f + q), v(tm + 2 + q))
        a.v_cvt_pk_bf16_f32(v(vP + 2 * tt), v(f), v(f + 1)); a.v_cvt_pk_bf16_f32(v(vP + 2 * tt + 1), v(f + 2), v(f + 3))
        a.s_add_u32(s(sT0), s(sXB), tt * 16384)
        a.buffer_store_dwordx2(v(vP + 2 * tt, 2), v(vXo), s(rOut, 4), s(sT0), m="offen")
    S.stamp(9)
    S.flush(16, sB, sW, rWS, vT, sT0)
    a.s_endpgm()
    nvM = V.hi
    V.restore(snap)
    a.label("F_H")
    sX, sWS, sWG, sWU = 4, 6, 8, 10
    P = dict(A_re=12, A_im=14, B_re=16, B_im=18, C_re=20, C_im=22, log_dt=24, Dskip=26)
    rX, rG, rU, rWS = 28, 32, 36, 40
    sH, sRB, sCB, sT0, sT1, sT2, sMASK, sN = 44, 45, 46, 47, 48, 49, 50, 51
    sXb, sWb, sMx, sQ3 = 52, 53, 54, 56
    sCH, sD, sNH, sTab, sTabP, sKR = 58, 59, 60, 61, 62, 63
    sU_ = 55
    sWD = 96 if stamps else 64; sOUT = sWD + 2
    rWD, sGS, sLW, sWBH = 12, 16, 17, 18
    a.s_load_dwordx2(s(sX, 2), s(0, 2), KA["x"])
    a.s_load_dwordx4(s(sWG, 4), s(0, 2), KA["wg"])
    a.s_load_dwordx2(s(sWS, 2), s(0, 2), KA["ws"])
    a.s_load_dwordx4(s(12, 4), s(0, 2), KA["A_re"]); a.s_load_dwordx4(s(16, 4), s(0, 2), KA["B_re"])
    a.s_load_dwordx4(s(20, 4), s(0, 2), KA["C_re"]); a.s_load_dwordx4(s(24, 4), s(0, 2), KA["log_dt"])
    a.s_load_dwordx4(s(sWD, 4), s(0, 2), KA["wd"])
    a.s_sub_u32(s(sH), s(sW), 4)
    tile_map(a, sB, sRB, sCB, sT0, sT1)
    a.s_mov_b32(s(sMASK), "0xffff0000")
    a.v_mov_b32(v(vGT), 0); a.v_lshlrev_b32(v(vT), 2, v(vLane)); a.v_add_u32(v(vT), L_CNT, v(vT))
    a.s_mov_b64("exec", "0xffffffff"); a.ds_write_b32(v(vT), v(vGT)); a.s_mov_b64("exec", -1)
    vXo = V.alloc(); vWo = V.alloc(4); vO1 = V.alloc(); vE = V.alloc()
    a.v_lshlrev_b32(v(vO1), 4, v(vLane))
    a.s_and_b32(s(sT0), s(sH), 1); a.s_lshl_b32(s(sT0), s(sT0), 2)
    a.v_lshrrev_b32(v(vT), 4, v(vLane)); a.v_add_u32(v(vT), s(sT0), v(vT)); a.v_and_b32(v(vT2), 7, v(vLane))
    a.v_xor_b32(v(vT), v(vT), v(vT2)); a.v_lshlrev_b32(v(vT), 4, v(vT)); a.v_lshrrev_b32(v(vT2), 3, v(vLane))
    a.v_lshl_add_u32(v(vXo), v(vT2), 10, v(vT))
    a.s_lshl_b32(s(sT0), s(sH), 6)
    for i in range(4):
        a.v_add_u32(v(vT), s(sT0), v(vLane))
        if i: a.v_add_u32(v(vT), 256 * i, v(vT))
        a.v_mul_u32_u24(v(vT2), 4370, v(vT)); a.v_lshrrev_b32(v(vT2), 16, v(vT2))
        a.v_mul_u32_u24(v(vT3), 15, v(vT2)); a.v_sub_u32(v(vT3), v(vT), v(vT3)); a.v_min_u32(v(vT3), 13, v(vT3))
        a.v_mul_u32_u24(v(vT2), 3584, v(vT2)); a.v_lshl_add_u32(v(vWo + i), v(vT3), 4, v(vT2))
    a.s_cmp_eq_u32(s(sH), 3); a.s_cselect_b64(s(sQ3, 2), 0, -1)
    a.s_lshl_b32(s(sXb), s(sRB), 17); a.s_lshl_b32(s(sT0), s(sH), 13); a.s_add_u32(s(sXb), s(sXb), s(sT0))
    a.s_mul_i32(s(sWb), s(sCB), 224); a.s_lshl_b32(s(sMx), s(sH), 10)
    a.s_waitcnt("lgkmcnt(0)")
    if "noprobe" not in variant:
        lpb = a.newlabel("F_PRB")
        a.s_cmp_eq_u32(s(sH), 0); a.s_cbranch_scc0(lpb)
        vPr = V.alloc(3, 2)
        a.v_mov_b32(v(vPr), s(sX)); a.v_mov_b32(v(vPr + 1), s(sX + 1))
        ptrs = [sWG, sWU, sWD, sOUT] + [P[k] for k in ("A_re", "A_im", "B_re", "B_im", "C_re", "C_im", "log_dt", "Dskip")]
        ln = 1
        for p_ in ptrs:
            a.v_writelane_b32(v(vPr), s(p_), ln); a.v_writelane_b32(v(vPr + 1), s(p_ + 1), ln); ln += 1
        for off in WS_PROBE:
            a.s_add_u32(s(sT0), s(sWS), off); a.s_addc_u32(s(sT1), s(sWS + 1), 0)
            a.v_writelane_b32(v(vPr), s(sT0), ln); a.v_writelane_b32(v(vPr + 1), s(sT1), ln); ln += 1
        a.global_load_dword(v(vPr + 2), v(vPr, 2), "off", m="sc1")
        a.label(lpb)
        V.free(vPr, 3)
    a.s_barrier()
    srd(a, rX, sX, 2048 * 1024); srd(a, rG, sWG, 512 * 3584); srd(a, rU, sWU, 512 * 3584)
    vm = VM(a)
    def issue_stage(st):
        slot = (st % 3) * SLOT
        for i in range(4):
            a.s_add_u32("m0", s(sMx), slot + XOFF + i * 4096)
            a.s_add_u32(s(sT0), s(sXb), st * 128 + i * 32768)
            a.buffer_load_dwordx4(v(vXo), s(rX, 4), s(sT0), m="offen lds"); vm.issue()
        a.s_add_u32(s(sT1), s(sWb), st * 64 * 3584)
        for i in range(4):
            if i == 3: a.s_mov_b64("exec", s(sQ3, 2))
            for (r_, off) in ((rG, GOFF), (rU, UOFF)):
                a.s_add_u32("m0", s(sMx), slot + off + i * 4096); a.s_nop(0)
                a.buffer_load_dwordx4(v(vWo + i), s(r_, 4), s(sT1), m="offen lds"); tok = vm.issue()
            if i == 3: a.s_mov_b64("exec", -1)
        return tok
    toks = {}
    toks[0] = issue_stage(0)
    S.stamp(1)
    toks[1] = issue_stage(1)
    srd(a, rWS, sWS, WS_SIZE)
    a.v_mov_b32(v(vT), 0); a.s_mov_b32(s(sT0), F_EPOCH)
    a.buffer_load_dword(v(vE), v(vT), s(rWS, 4), s(sT0), m="offen sc1"); tokE = vm.issue()
    cv2.cv_channel(a, sB, sH, sD, sCH, sNH, sT0, sT1)
    vP, vLd = cv2.cv_param_loads(a, V, P, sD, sT0, vLane, sNH); tokP = vm.issue(8)
    a.s_mul_i32(s(sTab), s(sH), TAB_W); a.s_add_u32(s(sTab), s(sTab), L_TAB)
    a.s_xor_b32(s(sT0), s(sH), 1); a.s_mul_i32(s(sTabP), s(sT0), TAB_W); a.s_add_u32(s(sTabP), s(sTabP), L_TAB)
    a.s_mul_i32(s(sKR), s(sCH), KR_CH); a.s_add_u32(s(sKR), s(sKR), L_KR)
    a.s_mul_i32(s(sU_), s(sCH), U_CH); a.s_add_u32(s(sU_), s(sU_), L_U)
    vm.wait(toks[0])
    S.stamp(2)
    a.s_barrier()
    toks[2] = issue_stage(2)
    vm.wait(toks[1])
    S.stamp(3)
    a.s_barrier()
    for k in range(1, 5):
        toks[k + 2] = issue_stage(k + 2)
        if k == 1:
            vm.wait(tokP); nonce_from(a, vE, sN)
            srd(a, rWD, sWD, 1792 * 1024)
            a.s_mul_i32(s(sLW), s(sH), RING2)
            a.s_lshr_b32(s(sT0), s(sB), 5); a.s_lshl_b32(s(sT0), s(sT0), 7)
            a.s_mul_i32(s(sWBH), s(sH), 14 * 32 * 1024); a.s_add_u32(s(sWBH), s(sWBH), s(sT0))
        vm.wait(toks[k + 1])
        S.stamp(3 + k)
        a.s_barrier()
    vFA = V.alloc(4, 4)
    a.s_mov_b32(s(sT2), F_A)
    a.buffer_load_dwordx4(v(vFA, 4), v(vO1), s(rWS, 4), s(sT2), m="offen sc1"); tokFA = vm.issue()
    toks[7] = issue_stage(7)
    vm.wait(max(toks[6], tokFA))
    for i in range(4): a.v_xor_b32(v(vFA + i), s(sN), v(vFA + i))
    a.v_or_b32(v(vFA), v(vFA), v(vFA + 1)); a.v_or_b32(v(vFA + 2), v(vFA + 2), v(vFA + 3)); a.v_or_b32(v(vFA), v(vFA), v(vFA + 2))
    a.v_cmp_ne_u32("vcc", 0, v(vFA))
    V.free(vFA, 4)
    l5 = a.newlabel("F_PA")
    a.s_nop(4)
    a.s_cbranch_vccz(l5)
    a.s_mov_b32(s(sT0), F_A)
    poll(a, V, rWS, sT0, vO1, 64, True, sN, sT1, sleep=8)
    a.label(l5)
    l6 = a.newlabel("F_EP")
    a.s_cmp_eq_u32(s(sB), 0); a.s_cbranch_scc0(l6)
    a.s_cmp_eq_u32(s(sH), 0); a.s_cbranch_scc0(l6)
    a.s_mov_b32(s(sT0), F_EPOCH)
    publish(a, V, rWS, sT0, sN)
    a.label(l6)
    S.stamp(8)
    a.s_barrier()
    vS4 = V.alloc(4, 4); vC = V.alloc(16)
    a.s_lshl_b32(s(sT0), s(sRB), 10); a.s_add_u32(s(sT0), s(sT0), WS_STATS)
    a.buffer_load_dwordx4(v(vS4, 4), v(vO1), s(rWS, 4), s(sT0), m=f"offen {HS}")
    a.s_mul_i32(s(sT0), s(sCB), 16 * 896); a.s_mul_i32(s(sT1), s(sH), 224); a.s_add_u32(s(sT0), s(sT0), s(sT1)); a.s_add_u32(s(sT0), s(sT0), WS_CSP)
    a.v_min_u32(v(vT2), 55, v(vLane)); a.v_lshlrev_b32(v(vT2), 2, v(vT2))
    for i in range(16):
        a.buffer_load_dword(v(vC + i), v(vT2), s(rWS, 4), s(sT0), m=f"offen offset:{(i % 4) * 896} {HS}")
        if i % 4 == 3 and i < 15: a.s_add_u32(s(sT0), s(sT0), 4 * 896)
    vU = cv2.u_loads(a, V, vLane, sD, sNH, rWS, sT0, sT1, HS)
    a.s_waitcnt("vmcnt(19)")
    S.stamp(9)
    a.s_barrier()
    a.s_waitcnt("vmcnt(2)")
    for i in range(1, 16): a.v_add_f32(v(vC), v(vC), v(vC + i))
    a.s_mul_i32(s(sT0), s(sH), 224); a.s_add_u32(s(sT0), s(sT0), AUX_CS); a.v_add_u32(v(vT2), s(sT0), v(vT2))
    a.ds_write_b32(v(vT2), v(vC))
    a.v_add_u32(v(vT), AUX_ST, v(vO1))
    a.ds_write_b128(v(vT), v(vS4, 4))
    a.s_waitcnt("lgkmcnt(0)")
    V.free(vS4, 4); V.free(vC, 16)
    S.stamp(10)
    a.s_barrier()
    a.s_lshl_b32(s(sT0), s(sCH), 4); a.s_add_u32(s(sT0), s(sT0), L_CNT); a.v_mov_b32(v(vGA), s(sT0))
    G = GroupSync(a, vGA, vGT, sGS)
    vDoH = V.alloc()
    a.v_lshrrev_b32(v(vT), 4, v(vLane)); a.v_lshlrev_b32(v(vT), 1, v(vT)); a.v_and_b32(v(vT), 6, v(vT))
    a.v_and_b32(v(vT2), 7, v(vLane)); a.v_xor_b32(v(vT), v(vT), v(vT2)); a.v_lshlrev_b32(v(vT), 4, v(vT))
    a.v_lshrrev_b32(v(vT2), 3, v(vLane)); a.v_lshl_add_u32(v(vDoH), v(vT2), 10, v(vT))
    a.s_waitcnt("vmcnt(0)")
    cv2.u_store(a, V, vU, vLane, sU_, sNH, sT0)
    for p in range(NSLOT):
        for q in range(4):
            a.s_add_u32("m0", s(sLW), p * 4096 + q * 1024)
            a.s_add_u32(s(sT0), s(sWBH), (32 * p + 8 * q) * 1024)
            a.buffer_load_dwordx4(v(vDoH), s(rWD, 4), s(sT0), m="offen lds")
    V.free(vDoH)
    cv2.zero_pads(a, V, vLane, sU_, sKR, sNH)
    vAcc, vDsk = cv2.kgen(a, V, S, vP, vLd, vLane, sTab, sT0)
    S.stamp(11)
    a.s_waitcnt("vmcnt(0)")
    a.s_lshl_b32(s(sT0), s(sH), 2); a.s_add_u32(s(sT0), s(sT0), L_CNT + C_WD); a.v_mov_b32(v(vT), s(sT0)); a.v_mov_b32(v(vT2), 1)
    a.s_mov_b64("exec", 1); a.ds_write_b32(v(vT), v(vT2)); a.s_mov_b64("exec", -1)
    cv2.pair_exchange(a, V, vAcc, vLane, sTab, sTabP, sNH, G, C_KX, 2)
    cv2.k_write(a, V, vAcc, vLane, sKR, sNH)
    V.free(vAcc, 32)
    a.s_waitcnt("lgkmcnt(0)")
    G.arrive(C_KR); G.wait(C_KR, 2)
    S.stamp(12)
    vY = cv2.conv(a, V, S, vLane, sKR, sU_, sNH, sT0, sT1, sT2, "FCV")
    S.stamp(13)
    cv2.pair_exchange(a, V, vY, vLane, sTab, sTabP, sNH, G, C_YX, 2)
    cv2.s_finish(a, V, vY, vDsk, vLane, sU_, sNH, sD, sMASK, rWS, sT0, sT1, HS)
    a.s_waitcnt("vmcnt(0)")
    S.stamp(14)
    a.v_mov_b32(v(vGA), L_CNT)
    lp = a.newlabel("F_PC")
    last_arriver(a, V, vGA, C_S, 4, sT0, lp)
    a.s_and_b32(s(sT0), s(sB), 7); a.s_lshl_b32(s(sT0), s(sT0), 9)
    a.s_lshr_b32(s(sT1), s(sB), 5); a.s_lshl_b32(s(sT1), s(sT1), 6); a.s_add_u32(s(sT0), s(sT0), s(sT1))
    a.s_bfe_u32(s(sT1), s(sB), (2 << 16) | 3); a.s_lshl_b32(s(sT1), s(sT1), 2); a.s_add_u32(s(sT0), s(sT0), s(sT1)); a.s_add_u32(s(sT0), s(sT0), F_C)
    publish(a, V, rWS, sT0, sN)
    a.label(lp)
    S.stamp(15)
    S.flush(16, sB, sW, rWS, vT, sT0)
    a.label("F_END")
    a.s_endpgm()
    return a, max(nvM, V.hi), 100 if stamps else 72
```

```python
import sys
sys.path.insert(0, "gen")
from common import *
import fused
HEADER = open("recurrent_scan__ssm_conv_s4__swiglu_ffn__prompt.s.ref").read().split("; Override launch")[0]
KN = "recurrent_scan__ssm_conv_s4__swiglu_ffn__prompt_kernel"
def mk(path, stamps, variant=""):
    a, nv, ns = fused.gen_fused(KN, stamps=stamps, variant=variant)
    lines, nn = fix_hazards(a.lines)
    print(f"fused: {len(lines)} lines, vgpr {nv}, sgpr {ns}, nops {nn}", file=sys.stderr)
    txt = HEADER + f"; @launch grid=(256,1,1) block=(512,1,1) lds={fused.LDS_TOTAL}\n"
    txt += '.amdgcn_target "amdgcn-amd-amdhsa--gfx950"\n.text\n' + "\n".join(kernel_text(KN, lines)) + "\n"
    txt += '.section .rodata,"a"\n' + descriptor(KN, nv, ns)
    open(path, "w").write(txt)
if __name__ == "__main__":
    mk(sys.argv[1], "stamp" in sys.argv[2:], sys.argv[3] if len(sys.argv) > 3 else "")
```
